```python
import torch

def _softmax(x, axis=-1):
    return torch.softmax(x, dim=axis)

def _gelu(x):
    return torch.nn.functional.gelu(x, approximate='tanh')

def _silu(x):
    return torch.nn.functional.silu(x)

def _sigmoid(x):
    return torch.sigmoid(x)

def _layernorm(x, axis=-1, eps=1e-05):
    m = x.mean(dim=axis, keepdim=True)
    v = x.var(dim=axis, keepdim=True, unbiased=False)
    return (x - m) / torch.sqrt(v + eps)

def _scatter_add(tgt, idx, src, axis=0):
    return tgt.clone().index_add_(axis, idx, src)

def _segment_sum(src, seg, n):
    out = torch.zeros((n,) + src.shape[1:], dtype=src.dtype)
    return out.index_add_(0, seg, src)

def _pad(x, pw):
    flat = tuple((v for pair in reversed(pw) for v in pair))
    return torch.nn.functional.pad(x, flat)
kernel_name = 'sequential_preLN__linear_kernel_hedgehog__mixer_gmlp__prompt'

def setup_inputs():

    _w = lambda a: (lambda t: t.to(torch.bfloat16) if t.is_floating_point() else t)(torch.as_tensor(a))

    def _A_setup():
        B, S, D, H = (1, 2048, 512, 32)
        Dh = D // H
        return {'x': _w((lambda *s: torch.randn(*s, dtype=torch.bfloat16) * 0.05)(B, S, D)), 'wqkv': _w((lambda *s: torch.randn(*s, dtype=torch.bfloat16) * 0.2)(D, 3 * D)), 'w_phi': _w((lambda *s: torch.randn(*s, dtype=torch.bfloat16) * 0.2)(H, Dh, Dh) * Dh ** (-0.5)), 'wo': _w((lambda *s: torch.randn(*s, dtype=torch.bfloat16) * 0.05)(D, D))}
    _A_in = _A_setup()

    def _B_setup():
        B, S, D, F = (1, 2048, 512, 1376)
        Fh = F // 2
        return {'x': _w((lambda *s: torch.randn(*s, dtype=torch.bfloat16) * 0.05)(B, S, D)), 'w_in': _w((lambda *s: torch.randn(*s, dtype=torch.bfloat16) * 0.2)(D, 2 * Fh)), 'w_sp': _w(0.01 * (lambda *s: torch.randn(*s, dtype=torch.bfloat16) * 0.2)(S, S)), 'b_sp': _w(1.0 + 0.01 * (lambda *s: torch.randn(*s, dtype=torch.bfloat16) * 0.05)(S)), 'w_out': _w((lambda *s: torch.randn(*s, dtype=torch.bfloat16) * 0.05)(Fh, D))}
    _B_in = _B_setup()
    return {'A_x': _A_in['x'], 'A_wqkv': _A_in['wqkv'], 'A_w_phi': _A_in['w_phi'], 'A_wo': _A_in['wo'], 'B_x': _B_in['x'], 'B_w_in': _B_in['w_in'], 'B_w_sp': _B_in['w_sp'], 'B_b_sp': _B_in['b_sp'], 'B_w_out': _B_in['w_out']}

def reference(A_x, A_wqkv, A_w_phi, A_wo, B_x, B_w_in, B_w_sp, B_b_sp, B_w_out):

    def _A_ref(x, wqkv, w_phi, wo):
        B, S, D = x.shape
        H = 32
        Dh = D // H
        qkv = (lambda x, *d: x.permute(*d))((x @ wqkv).reshape(B, S, 3, H, Dh), 2, 0, 3, 1, 4)
        q, k, v = (qkv[0], qkv[1], qkv[2])
        pq = torch.einsum('bhsd,hdf->bhsf', q, w_phi)
        pk = torch.einsum('bhsd,hdf->bhsf', k, w_phi)
        phi_q = torch.concatenate([_softmax(pq, axis=-1), _softmax(-pq, axis=-1)], axis=-1)
        phi_k = torch.concatenate([_softmax(pk, axis=-1), _softmax(-pk, axis=-1)], axis=-1)
        kv = torch.einsum('bhsf,bhsd->bhfd', phi_k, v)
        z = torch.einsum('bhsf->bhf', phi_k)
        num = torch.einsum('bhqf,bhfd->bhqd', phi_q, kv)
        den = torch.einsum('bhqf,bhf->bhq', phi_q, z)[..., None] + 1e-06
        o = num / den
        return (lambda x, *d: x.permute(*d))(o, 0, 2, 1, 3).reshape(B, S, D) @ wo

    def _B_ref(x, w_in, w_sp, b_sp, w_out):
        B, S, D = x.shape
        F = w_in.shape[-1]
        Fh = F // 2
        z = _gelu(torch.einsum('bsd,df->bsf', x, w_in))
        z1 = z[..., :Fh].clone()
        z2 = _layernorm(z[..., Fh:], axis=-1)
        g = torch.einsum('ts,bsf->btf', w_sp, z2) + b_sp[None, :, None]
        return torch.einsum('bsf,fd->bsd', z1 * g, w_out)
    x = A_x
    h = x + _A_ref(_layernorm(x, axis=-1), A_wqkv, A_w_phi, A_wo)
    h2 = h + _B_ref(_layernorm(h, axis=-1), B_w_in, B_w_sp, B_b_sp, B_w_out)
    return h2
```

```python
L=[]
def e(s):
    for ln in s.strip('\n').split('\n'): L.append('  '+ln.strip())
def lab(s): L.append(s+':')
MB=1<<20
KV,PHIQ,HH,Z1,Z2T,UU,STATS=0,1*MB,5*MB,8*MB,12*MB,16*MB,20*MB
SZ={'x':2097152,'wqkv':1572864,'wphi':16384,'wo':524288,'win':1409024,'wsp':8388608,'bsp':4096,'wout':704512,'out':2097152,'dbg':256,'ws':268435456}
PT={'x':8,'wqkv':10,'wphi':12,'wo':14,'win':18,'wsp':20,'bsp':22,'wout':24,'out':26,'dbg':28,'ws':30}
KD=[]
def begin(name,vg):
    KD.append((name,vg))
    L.append(f'.globl {name}\n.p2align 8\n.type {name},@function\n{name}:')
    e(f'''s_cmp_ge_u32 s2, 256
    s_cbranch_scc1 {name}_end
    s_load_dwordx16 s[8:23], s[0:1], 0
    s_load_dwordx8 s[24:31], s[0:1], 64
    s_and_b32 s3, s2, 7
    s_lshr_b32 s4, s2, 3
    s_lshl_b32 s5, s3, 2
    s_lshr_b32 s6, s4, 3
    s_add_u32 s5, s5, s6
    s_and_b32 s6, s4, 7
    v_lshrrev_b32 v1, 6, v0
    v_and_b32 v2, 63, v0
    v_readfirstlane_b32 s7, v1
    v_and_b32 v3, 31, v0
    v_bfe_u32 v4, v0, 5, 1
    s_waitcnt lgkmcnt(0)''')
def srd(r,n):
    e(f'''s_mov_b32 s{r}, s{PT[n]}
    s_mov_b32 s{r+1}, s{PT[n]+1}
    s_mov_b32 s{r+2}, {SZ[n]}
    s_mov_b32 s{r+3}, 0x00020000''')
def end(name):
    lab(name+'_end'); e('s_endpgm')
def vr(a,n): return f'v[{a}:{a+n-1}]'
def mfma(d,a,b,c=None):
    e(f'v_mfma_f32_32x32x16_bf16 {vr(d,16)}, {vr(a,4)}, {vr(b,4)}, '+(vr(d,16) if c is None else c))
def tr_base(dst,t1,t2,rowsh,himul,stride=128,swz=True,ctbit=None):
    e(f'''v_bfe_u32 v{t1}, v2, 2, 2
    v_mad_u32_u24 v{dst}, v4, {himul}, v{t1}
    v_mul_u32_u24 v{dst}, {stride}, v{dst}
    v_bfe_u32 v{t2}, v2, 4, 1
    v_lshlrev_b32 v{t2}, 5, v{t2}
    v_and_b32 v{t1}, 3, v2
    v_lshl_add_u32 v{t2}, v{t1}, 3, v{t2}''')
    if ctbit is not None: e(f'v_add_u32 v{t2}, {ctbit}, v{t2}')
    if swz:
        e(f'''v_bfe_u32 v{t1}, v2, 3, 1
        v_lshlrev_b32 v{t1}, 6, v{t1}
        v_xor_b32 v{t2}, v{t1}, v{t2}''')
    e(f'v_add_u32 v{dst}, v{dst}, v{t2}')
def red8(v,t):
    for m in ('quad_perm:[1,0,3,2]','quad_perm:[2,3,0,1]','row_half_mirror'):
        e(f's_nop 1\nv_add_f32_dpp v{v}, v{v}, v{v} {m} row_mask:0xf bank_mask:0xf')
ACC=112
def front(name,xs,xoff,stride,colbase,pre):
    e(f'''s_cmp_ge_u32 s7, 6
    s_cselect_b32 s49, 1, 0
    s_mul_i32 s48, s49, 6
    s_sub_u32 s48, s7, s48
    s_lshr_b32 s51, s7, 2''')
    colbase()
    e(f'''s_lshl_b32 s52, s5, 16
    s_add_u32 s52, s52, {xoff}
    v_lshrrev_b32 v5, 3, v0
    v_and_b32 v6, 7, v0
    v_lshlrev_b32 v7, 10, v5
    v_lshl_add_u32 v7, v6, 4, v7
    s_cmp_ge_u32 s7, 8
    s_cbranch_scc1 {name}_nox''')
    for i in range(8): e(f'buffer_load_dwordx4 {vr(16+4*i,4)}, v7, s[{xs}:{xs+3}], s52 offen offset:{i*128}')
    lab(name+'_nox')
    e(f'''s_and_b32 s53, s7, 3
    s_lshl_b32 s53, s53, 4
    v_lshrrev_b32 v8, 3, v2
    v_add_u32 v8, s53, v8
    v_mul_u32_u24 v8, {stride}, v8
    v_bfe_u32 v9, v2, 4, 1
    v_lshlrev_b32 v9, 2, v9
    v_and_b32 v10, 7, v2
    v_xor_b32 v9, v9, v10
    v_lshl_add_u32 v8, v9, 4, v8
    v_add_u32 v8, s50, v8
    v_add_u32 v9, {8*stride-1024}, v8
    s_lshl_b32 s54, s7, 11
    s_add_u32 s54, s54, 65536''')
    def dma(st):
        e(f'''s_add_u32 m0, s54, {(st&3)*24576}
        s_mov_b32 s55, {st*64*stride}
        buffer_load_dwordx4 v8, s[36:39], s55 offen lds
        buffer_load_dwordx4 v9, s[36:39], s55 offen offset:1024 lds''')
    pre(0)
    for st in range(4): dma(st)
    pre(1)
    e(f'''s_cmp_ge_u32 s7, 8
    s_cbranch_scc1 {name}_noln
    s_waitcnt vmcnt(8)''')
    for i in range(32):
        e(f'v_lshlrev_b32 v{48+2*i}, 16, v{16+i}\nv_and_b32 v{49+2*i}, 0xffff0000, v{16+i}')
    e(f'v_pk_add_f32 v[12:13], v[48:49], v[50:51]\nv_pk_mul_f32 v[14:15], v[48:49], v[48:49]\nv_pk_fma_f32 v[14:15], v[50:51], v[50:51], v[14:15]')
    for i in range(2,32):
        p=vr(48+2*i,2); e(f'v_pk_add_f32 v[12:13], v[12:13], {p}\nv_pk_fma_f32 v[14:15], {p}, {p}, v[14:15]')
    e('v_add_f32 v12, v12, v13\nv_add_f32 v14, v14, v15')
    red8(12,0); red8(14,0)
    e(f'''v_mul_f32 v12, 0x3b000000, v12
    v_mul_f32 v14, 0x3b000000, v14
    v_fma_f32 v14, -v12, v12, v14
    v_max_f32 v14, 0, v14
    v_add_f32 v14, 0x3727c5ac, v14
    v_rsq_f32 v14, v14
    v_bfe_u32 v10, v5, 1, 3
    v_xor_b32 v10, v10, v6
    v_mul_f32 v12, v12, v14
    v_mov_b32 v15, v14
    v_mul_f32 v12, -1.0, v12
    v_lshlrev_b32 v10, 4, v10
    v_mov_b32 v13, v12
    v_lshl_add_u32 v10, v5, 7, v10''')
    for i in range(8):
        for j in range(4):
            p=vr(48+8*i+2*j,2); e(f'v_pk_fma_f32 {p}, {p}, v[14:15], v[12:13]')
        for j in range(4):
            e(f'v_cvt_pk_bf16_f32 v{16+4*i+j}, v{48+8*i+2*j}, v{49+8*i+2*j}')
        e(f'ds_write_b128 v10, {vr(16+4*i,4)} offset:{i*8192}')
    lab(name+'_noln')
    e('s_and_b32 s56, s48, 1\ns_lshl_b32 s56, s56, 6')
    tr_base(11,5,6,0,8,ctbit='s56')
    e(f'''s_lshr_b32 s56, s48, 1
    s_lshl_b32 s56, s56, 13
    s_add_u32 s56, s56, 65536
    v_add_u32 v11, s56, v11
    v_add_u32 v10, 49152, v11
    s_lshl_b32 s56, s49, 12
    v_lshlrev_b32 v5, 7, v3
    v_add_u32 v5, s56, v5
    v_bfe_u32 v6, v3, 1, 3
    v_xor_b32 v6, v6, v4''')
    for ks in range(4):
        e(f'v_xor_b32 v7, {2*ks}, v6\nv_lshl_add_u32 v{12+ks}, v7, 4, v5')
    vm=[6,4,4,4,4,4,2,0]
    def reads(st):
        o=(st&1)*32; sl=st&3
        base,so=(11,sl*24576) if sl<2 else (10,(sl-2)*24576)
        for ks in range(4):
            e(f'''ds_read_b64_tr_b16 {vr(16+o+4*ks,2)}, v{base} offset:{so+ks*2048}
            ds_read_b64_tr_b16 {vr(18+o+4*ks,2)}, v{base} offset:{so+ks*2048+512}
            ds_read_b128 {vr(32+o+4*ks,4)}, v{12+ks} offset:{st*8192}''')
    for st in range(8):
        e(f's_waitcnt vmcnt({vm[st]}) lgkmcnt(0)\ns_barrier')
        reads(st)
        if st>=1 and st+3<8: dma(st+3)
        if st>=1:
            o=((st-1)&1)*32
            for ks in range(4): mfma(ACC,16+o+4*ks,32+o+4*ks,'0' if (st==1 and ks==0) else None)
    e('s_waitcnt lgkmcnt(0)')
    for ks in range(4): mfma(ACC,48+4*ks,64+4*ks)
```

```python
from g1 import *
LOG2E=0x3fb8aa3b
def swapred(op,v,t):
    e(f'v_mov_b32 v{t}, v{v}\ns_nop 1\nv_permlane32_swap_b32 v{v}, v{t}\ns_nop 1\n{op} v{v}, v{v}, v{t}')
def softmax8(b,m,t):
    e(f'v_max3_f32 v{m}, v{b}, v{b+1}, v{b+2}\nv_max3_f32 v{m}, v{m}, v{b+3}, v{b+4}\nv_max3_f32 v{m}, v{m}, v{b+5}, v{b+6}\nv_max_f32 v{m}, v{m}, v{b+7}')
    swapred('v_max_f32',m,t)
    e(f'v_mul_f32 v{m}, s60, v{m}')
    for i in range(8): e(f'v_fma_f32 v{b+i}, v{b+i}, s60, -v{m}')
    for i in range(8): e(f'v_exp_f32 v{b+i}, v{b+i}')
    e(f's_nop 0\nv_add_f32 v{m}, v{b}, v{b+1}')
    for i in range(2,8): e(f'v_add_f32 v{m}, v{m}, v{b+i}')
    swapred('v_add_f32',m,t)
    e(f'v_rcp_f32 v{m}, v{m}\ns_nop 0')
    for i in range(8): e(f'v_mul_f32 v{b+i}, v{b+i}, v{m}')
def kernelA():
    n='ka_kernel'; begin(n,152)
    srd(32,'x'); srd(36,'wqkv'); srd(40,'ws'); srd(44,'wphi'); srd(64,'dbg')
    def colbase(): e('s_lshl_b32 s50, s51, 10\ns_lshl_b32 s56, s6, 7\ns_add_u32 s50, s50, s56')
    def pre(ph):
        if ph==0:
            e(f'''s_and_b32 s56, s48, 1
            s_lshl_b32 s56, s56, 10
            s_lshl_b32 s57, s6, 11
            s_add_u32 s56, s56, s57
            v_and_b32 v10, 15, v2
            v_lshlrev_b32 v10, 1, v10
            v_lshl_add_u32 v10, v4, 7, v10''')
            for a in range(2):
                for j in range(8):
                    d=(j&3)+8*(j>>2)
                    e(f'buffer_load_ushort v{136+8*a+j}, v10, s[44:47], s56 offen offset:{a*512+d*32}')
            e(f'''s_cmp_lg_u32 s5, 0
            s_cbranch_scc1 {n}_nz
            s_cmp_lt_u32 s7, 8
            s_cbranch_scc1 {n}_nz
            s_lshl_b32 s56, s6, 2
            s_add_u32 s56, s56, s7
            s_sub_u32 s56, s56, 8
            s_lshl_b32 s56, s56, 12
            v_lshlrev_b32 v10, 4, v2
            v_mov_b32 v12, 0
            v_mov_b32 v13, 0
            v_mov_b32 v14, 0
            v_mov_b32 v15, 0''')
            for i in range(3): e(f'buffer_store_dwordx4 v[12:15], v10, s[40:43], s56 offen offset:{i*1024} sc0 sc1')
            lab(n+'_nz')
        else:
            e(f'''s_cmp_lg_u32 s5, 0
            s_cbranch_scc1 {n}_nf
            s_cmp_lt_u32 s7, 8
            s_cbranch_scc1 {n}_nf
            s_waitcnt vmcnt(0)
            s_lshl_b32 s56, s6, 2
            v_mov_b32 v12, 1
            v_mov_b32 v13, 0
            s_mov_b64 exec, 1
            buffer_atomic_add v12, v13, s[64:67], s56 offen sc1
            s_mov_b64 exec, -1''')
            lab(n+'_nf')
    front(n,32,0,3072,colbase,pre)
    e(f'''s_mov_b32 s60, {LOG2E}
    v_bfe_u32 v5, v2, 4, 1
    v_mul_u32_u24 v5, 0x8000, v5
    v_lshl_or_b32 v5, v5, 16, v5''')
    for i in range(8): e(f'v_lshl_or_b32 v{128+i}, v{137+2*i}, 16, v{136+2*i}\nv_xor_b32 v{128+i}, v5, v{128+i}')
    e('s_nop 7\ns_nop 3')
    for i in range(8): e(f'v_cvt_pk_bf16_f32 v{16+i}, v{ACC+2*i}, v{ACC+2*i+1}')
    e(f'''s_lshl_b32 s56, s49, 5
    v_add_u32 v6, s56, v3
    s_and_b32 s57, s48, 1
    s_cmp_ge_u32 s48, 4
    s_cbranch_scc1 {n}_v''')
    mfma(32,128,16,'0'); mfma(48,132,20,'0')
    e('s_nop 7\ns_nop 3')
    softmax8(32,24,25); softmax8(40,26,27); softmax8(48,24,25); softmax8(56,26,27)
    for i in range(16): e(f'v_cvt_pk_bf16_f32 v{64+i}, v{32+2*i}, v{33+2*i}')
    e(f'''s_cmp_ge_u32 s48, 2
    s_cbranch_scc1 {n}_k
    s_lshl_b32 s56, s5, 1
    s_add_u32 s56, s56, s49
    s_lshl_b32 s56, s56, 16
    s_lshl_b32 s58, s6, 13
    s_add_u32 s56, s56, s58
    s_lshl_b32 s58, s57, 12
    s_add_u32 s56, s56, s58
    s_add_u32 s56, s56, {PHIQ}
    v_lshlrev_b32 v7, 4, v2''')
    for i in range(4): e(f'buffer_store_dwordx4 {vr(64+4*i,4)}, v7, s[40:43], s56 offen offset:{i*1024}')
    e(f's_barrier\ns_barrier\ns_endpgm')
    lab(n+'_k')
    e(f'''v_mul_u32_u24 v7, 272, v6
    v_lshl_add_u32 v7, v4, 5, v7
    s_lshl_b32 s56, s57, 7
    v_add_u32 v7, s56, v7
    s_barrier''')
    for i in range(4): e(f'ds_write_b128 v7, {vr(64+4*i,4)} offset:{(i>>1)*64+(i&1)*16}')
    e(f's_waitcnt lgkmcnt(0)\ns_barrier\ns_endpgm')
    lab(n+'_v')
    e(f'''v_mul_u32_u24 v7, 144, v6
    v_lshl_add_u32 v7, v4, 4, v7
    s_lshl_b32 s56, s57, 6
    v_add_u32 v7, s56, v7
    s_barrier
    ds_write_b128 v7, v[16:19] offset:17408
    ds_write_b128 v7, v[20:23] offset:17440
    s_lshl_b32 s58, s49, 1
    s_add_u32 s58, s58, s57
    s_lshl_b32 s56, s6, 2
    v_mov_b32 v9, 0
    s_mov_b32 s59, 0''')
    lab(n+'_poll')
    e(f'''buffer_load_dword v8, v9, s[64:67], s56 offen sc0 sc1
    s_add_u32 s59, s59, 1
    s_waitcnt vmcnt(0)
    v_readfirstlane_b32 s61, v8
    s_cmp_gt_u32 s59, 0x4000
    s_cbranch_scc1 {n}_go
    s_cmp_lt_u32 s61, 4
    s_cbranch_scc1 {n}_poll''')
    lab(n+'_go')
    tr_base(10,5,6,0,8,stride=272,swz=False)
    e(f'''v_bfe_u32 v5, v2, 2, 2
    v_lshl_add_u32 v11, v4, 3, v5
    v_mul_u32_u24 v11, 144, v11
    v_and_b32 v5, 3, v2
    v_lshl_add_u32 v11, v5, 3, v11
    s_lshl_b32 s57, s58, 6
    v_add_u32 v10, s57, v10
    s_lshl_b32 s57, s58, 5
    v_add_u32 v11, s57, v11
    v_cmp_lt_u32 vcc, 15, v3
    v_mov_b32 v12, 0x3f803f80
    s_waitcnt lgkmcnt(0)
    s_barrier''')
    for ks in range(4):
        for h in range(2):
            e(f'ds_read_b64_tr_b16 {vr(16+4*ks+2*h,2)}, v11 offset:{17408+(ks*16+4*h)*144}')
            e(f'ds_read_b64_tr_b16 {vr(32+4*ks+2*h,2)}, v10 offset:{(ks*16+4*h)*272}')
    e('s_waitcnt lgkmcnt(0)')
    for i in range(16): e(f'v_cndmask_b32 v{16+i}, v{16+i}, v12, vcc')
    e('s_nop 1')
    for ks in range(4): mfma(48,16+4*ks,32+4*ks,'0' if ks==0 else None)
    e(f'''s_add_u32 s56, s56, s58
    s_lshl_b32 s56, s56, 12
    v_lshlrev_b32 v7, 2, v3
    v_lshl_add_u32 v7, v4, 9, v7
    s_nop 7
    s_nop 3''')
    for r in range(8): e(f'buffer_atomic_add_f32 v{48+r}, v7, s[40:43], s56 offen offset:{((r&3)+8*(r>>2))*128} sc1')
    e('s_mov_b64 exec, 0xffffffff\nbuffer_atomic_add_f32 v56, v7, s[40:43], s56 offen offset:2048 sc1')
    end(n)
import struct,math
def fb(x): return hex(struct.unpack('<I',struct.pack('<f',x))[0])
def kernelB2():
    n='kb2_kernel'; begin(n,152)
    srd(36,'win'); srd(40,'ws')
    def colbase(): e('''s_lshr_b32 s56, s6, 2
        s_mul_i32 s50, s56, 1376
        s_and_b32 s56, s6, 3
        s_mul_i32 s56, s56, 384
        s_add_u32 s50, s50, s56
        s_lshl_b32 s56, s51, 7
        s_add_u32 s50, s50, s56''')
    front(n,40,HH,2752,colbase,lambda ph:None)
    k0=-2*0.7978845608028654*math.log2(math.e)
    e(f'''s_mov_b32 s60, {fb(k0*0.044715)}
    v_mov_b32 v5, {fb(k0)}
    s_and_b32 s57, s6, 3
    s_mul_i32 s57, s57, 6
    s_add_u32 s57, s57, s48
    s_lshl_b32 s58, s5, 1
    s_add_u32 s58, s58, s49
    s_nop 7
    s_nop 1''')
    A=ACC
    for i in range(16): e(f'v_mul_f32 v{16+i}, v{A+i}, v{A+i}')
    for i in range(16): e(f'v_fma_f32 v{16+i}, v{16+i}, s60, v5')
    for i in range(16): e(f'v_mul_f32 v{16+i}, v{16+i}, v{A+i}')
    for i in range(16): e(f'v_exp_f32 v{16+i}, v{16+i}')
    for i in range(16): e(f'v_add_f32 v{16+i}, 1.0, v{16+i}')
    for i in range(16): e(f'v_rcp_f32 v{16+i}, v{16+i}')
    for i in range(16): e(f'v_mul_f32 v{A+i}, v{16+i}, v{A+i}')
    e(f's_cmp_ge_u32 s6, 4\ns_cbranch_scc1 {n}_z2')
    for i in range(8): e(f'v_cvt_pk_bf16_f32 v{16+i}, v{A+2*i}, v{A+2*i+1}')
    e(f'''s_mul_i32 s56, s58, 24
    s_add_u32 s56, s56, s57
    s_lshl_b32 s56, s56, 11
    s_add_u32 s56, s56, {Z1}
    v_lshlrev_b32 v7, 4, v2
    buffer_store_dwordx4 v[16:19], v7, s[40:43], s56 offen
    buffer_store_dwordx4 v[20:23], v7, s[40:43], s56 offen offset:1024
    s_endpgm''')
    lab(n+'_z2')
    e(f's_cmp_lt_u32 s57, 21\ns_cbranch_scc1 {n}_nm')
    for i in range(8,16): e(f'v_mov_b32 v{A+i}, 0')
    e(f's_cmp_lt_u32 s57, 22\ns_cbranch_scc1 {n}_nm')
    for i in range(8): e(f'v_mov_b32 v{A+i}, 0')
    lab(n+'_nm')
    e(f'v_pk_add_f32 v[16:17], {vr(A,2)}, {vr(A+2,2)}\nv_pk_mul_f32 v[18:19], {vr(A,2)}, {vr(A,2)}\nv_pk_fma_f32 v[18:19], {vr(A+2,2)}, {vr(A+2,2)}, v[18:19]')
    for i in range(2,8):
        p=vr(A+2*i,2); e(f'v_pk_add_f32 v[16:17], v[16:17], {p}\nv_pk_fma_f32 v[18:19], {p}, {p}, v[18:19]')
    e('v_add_f32 v16, v16, v17\nv_add_f32 v17, v18, v19')
    swapred('v_add_f32',16,18); swapred('v_add_f32',17,19)
    e(f'''s_lshl_b32 s56, s49, 5
    v_add_u32 v6, s56, v3
    v_lshlrev_b32 v6, 3, v6
    s_lshl_b32 s56, s48, 9
    v_add_u32 v7, s56, v6
    s_barrier
    ds_write_b64 v7, v[16:17]
    s_waitcnt lgkmcnt(0)
    s_barrier
    s_cmp_lg_u32 s7, 0
    s_cbranch_scc1 {n}_w
    v_lshlrev_b32 v7, 3, v2''')
    for c in range(6): e(f'ds_read_b64 {vr(16+2*c,2)}, v7 offset:{c*512}')
    e(f'''s_lshl_b32 s56, s5, 11
    s_add_u32 s56, s56, {STATS}
    s_and_b32 s59, s6, 3
    s_lshl_b32 s59, s59, 9
    s_add_u32 s59, s59, s56
    s_waitcnt lgkmcnt(0)''')
    for c in range(1,6): e(f'v_pk_add_f32 v[16:17], v[16:17], {vr(16+2*c,2)}')
    e(f'buffer_store_dwordx2 v[16:17], v7, s[40:43], s59 offen sc0 sc1\ns_mov_b32 s59, 0')
    lab(n+'_poll')
    for c in range(4): e(f'buffer_load_dwordx2 {vr(20+2*c,2)}, v7, s[40:43], s56 offen offset:{c*512} sc0 sc1')
    e(f'''s_add_u32 s59, s59, 1
    s_waitcnt vmcnt(0)
    v_max_u32 v18, v21, v23
    v_max3_u32 v18, v18, v25, v27
    v_cmp_eq_u32 vcc, -1, v18
    s_cmp_gt_u32 s59, 0x4000
    s_cbranch_scc1 {n}_go
    s_nop 1
    s_cbranch_vccnz {n}_poll''')
    lab(n+'_go')
    e(f'''v_pk_add_f32 v[20:21], v[20:21], v[22:23]
    v_pk_add_f32 v[24:25], v[24:25], v[26:27]
    v_pk_add_f32 v[20:21], v[20:21], v[24:25]
    v_mul_f32 v20, {fb(1/688)}, v20
    v_mul_f32 v21, {fb(1/688)}, v21
    v_fma_f32 v21, -v20, v20, v21
    v_max_f32 v21, 0, v21
    v_add_f32 v21, 0x3727c5ac, v21
    v_rsq_f32 v21, v21
    s_nop 0
    v_mul_f32 v20, v20, v21
    v_mul_f32 v20, -1.0, v20
    ds_write_b64 v7, v[20:21] offset:4096
    s_waitcnt lgkmcnt(0)''')
    lab(n+'_w')
    e(f'''s_barrier
    ds_read_b64 v[16:17], v6 offset:4096
    s_mul_i32 s56, s7, 2560
    s_add_u32 s56, s56, 8192
    v_mul_u32_u24 v7, 80, v3
    v_lshl_add_u32 v7, v4, 3, v7
    v_add_u32 v7, s56, v7''')
    tr_base(10,8,9,0,8,stride=80,swz=False,ctbit='s56')
    e(f'''s_mul_i32 s56, s5, 98304
    s_lshl_b32 s59, s57, 12
    s_add_u32 s56, s56, s59
    s_add_u32 s56, s56, {Z2T}
    s_lshl_b32 s59, s49, 2
    v_bfe_u32 v8, v3, 1, 3
    v_xor_b32 v8, v8, v4
    v_xor_b32 v8, s59, v8
    v_xor_b32 v9, 2, v8
    v_lshlrev_b32 v11, 7, v3
    v_lshl_add_u32 v8, v8, 4, v11
    v_lshl_add_u32 v9, v9, 4, v11
    s_waitcnt lgkmcnt(0)''')
    for i in range(16): e(f'v_fma_f32 v{A+i}, v{A+i}, v17, v16')
    for i in range(8): e(f'v_cvt_pk_bf16_f32 v{20+i}, v{A+2*i}, v{A+2*i+1}')
    for q in range(4): e(f'ds_write_b64 v7, {vr(20+2*q,2)} offset:{q*16}')
    e('s_waitcnt lgkmcnt(0)')
    for m in range(2):
        for h in range(2): e(f'ds_read_b64_tr_b16 {vr(32+4*m+2*h,2)}, v10 offset:{(m*16+4*h)*80}')
    e(f'''s_waitcnt lgkmcnt(0)
    buffer_store_dwordx4 v[32:35], v8, s[40:43], s56 offen
    buffer_store_dwordx4 v[36:39], v9, s[40:43], s56 offen''')
    end(n)
```

```python
from g2 import *
def wdma(nin):
    e(f'''s_mul_i32 s50, s7, {nin*8192}
    s_lshl_b32 s51, s6, 7
    s_add_u32 s50, s50, s51
    s_mul_i32 s51, s7, {nin*1024}
    v_lshrrev_b32 v8, 3, v2
    v_lshlrev_b32 v8, 10, v8
    v_bfe_u32 v9, v2, 4, 1
    v_lshlrev_b32 v9, 2, v9
    v_and_b32 v10, 7, v2
    v_xor_b32 v9, v9, v10
    v_lshl_add_u32 v8, v9, 4, v8''')
    for i in range(nin):
        e(f'''s_add_u32 m0, s51, {i*1024}
        s_add_u32 s52, s50, {i*8192}
        buffer_load_dwordx4 v8, s[36:39], s52 offen lds''')
def resload(rs,off,dst):
    e(f'''s_lshl_b32 s53, s5, 16
    s_lshl_b32 s54, s6, 7
    s_add_u32 s53, s53, s54
    s_add_u32 s54, s53, {off}
    v_lshrrev_b32 v5, 3, v0
    v_and_b32 v6, 7, v0
    v_lshlrev_b32 v7, 10, v5
    v_lshl_add_u32 v7, v6, 4, v7
    buffer_load_dwordx4 {vr(dst,4)}, v7, s[{rs}:{rs+3}], s54 offen''')
def reduce_out(acc,RB,res,os,ooff):
    e(f'''s_mul_i32 s56, s48, 17408
    s_mul_i32 s57, s49, {32*272}
    s_add_u32 s56, s56, s57
    s_add_u32 s56, s56, {RB}
    v_mul_u32_u24 v8, 272, v3
    v_lshl_add_u32 v8, v4, 4, v8
    v_add_u32 v8, s56, v8
    v_mul_u32_u24 v9, 272, v5
    v_lshl_add_u32 v9, v6, 5, v9
    v_add_u32 v9, {RB}, v9
    s_add_u32 s54, s53, {ooff}
    s_nop 7''')
    for ct in range(2):
        for q in range(4): e(f'ds_write_b128 v8, {vr(acc+16*ct+4*q,4)} offset:{ct*128+q*32}')
    e('s_waitcnt lgkmcnt(0)\ns_barrier')
    for k in range(4):
        for h in range(2): e(f'ds_read_b128 {vr(16+8*k+4*h,4)}, v9 offset:{k*17408+h*16}')
    e('s_waitcnt vmcnt(0)')
    for i in range(4): e(f'v_lshlrev_b32 v{48+2*i}, 16, v{res+i}\nv_and_b32 v{49+2*i}, 0xffff0000, v{res+i}')
    e('s_waitcnt lgkmcnt(0)')
    for k in (0,2):
        for i in range(4): e(f'v_pk_add_f32 {vr(16+8*k+2*i,2)}, {vr(16+8*k+2*i,2)}, {vr(24+8*k+2*i,2)}')
    for i in range(4): e(f'v_pk_add_f32 {vr(16+2*i,2)}, {vr(16+2*i,2)}, {vr(32+2*i,2)}')
    for i in range(4): e(f'v_pk_add_f32 {vr(16+2*i,2)}, {vr(16+2*i,2)}, {vr(48+2*i,2)}')
    for i in range(4): e(f'v_cvt_pk_bf16_f32 v{24+i}, v{16+2*i}, v{17+2*i}')
    e(f'buffer_store_dwordx4 v[24:27], v7, s[{os}:{os+3}], s54 offen')
def kernelB1():
    n='kb1_kernel'; begin(n,256)
    srd(32,'x'); srd(36,'wo'); srd(40,'ws')
    e(f'''s_and_b32 s49, s7, 1
    s_lshr_b32 s48, s7, 1
    s_lshl_b32 s56, s48, 15
    v_min_u32 v5, 16, v3
    v_lshlrev_b32 v5, 7, v5
    v_lshl_add_u32 v5, v4, 6, v5
    s_lshl_b32 s57, s5, 1
    s_add_u32 s57, s57, s49
    s_lshl_b32 s57, s57, 16
    s_lshl_b32 s58, s48, 14
    s_add_u32 s57, s57, s58
    s_add_u32 s57, s57, {PHIQ}
    v_lshlrev_b32 v6, 4, v2''')
    for hh in range(8):
        for i in range(4): e(f'buffer_load_dwordx4 {vr(80+16*hh+4*i,4)}, v5, s[40:43], s56 offen offset:{i*16}')
        for f in range(2): e(f'buffer_load_dwordx4 {vr(16+8*hh+4*f,4)}, v6, s[40:43], s57 offen offset:{(hh&1)*2048+f*1024}')
        e('s_add_u32 s56, s56, 4096')
        if hh&1: e('s_add_u32 s57, s57, 4096')
        if hh==1: wdma(8)
    resload(32,0,12)
    e(f'''s_cmp_lg_u32 s7, 0
    s_cbranch_scc1 {n}_ns
    s_cmp_ge_u32 s6, 4
    s_cbranch_scc1 {n}_ns
    s_lshl_b32 s56, s5, 11
    s_lshl_b32 s57, s6, 9
    s_add_u32 s56, s56, s57
    s_add_u32 s56, s56, {STATS}
    v_lshlrev_b32 v8, 3, v2
    v_mov_b32 v10, -1
    v_mov_b32 v11, -1
    buffer_store_dwordx2 v[10:11], v8, s[40:43], s56 offen
    s_waitcnt vmcnt(0)''')
    lab(n+'_ns')
    tr_base(11,8,9,0,8)
    e(f's_lshl_b32 s56, s48, 14\nv_add_u32 v11, s56, v11\nv_xor_b32 v10, 64, v11')
    AC=208; T=240
    for hh in range(8):
        b=80+16*hh; q=16+8*hh
        left=1+6*(7-hh)+(8 if hh<2 else 0)
        if hh==0: left=1+6*6
        e(f's_waitcnt vmcnt({left})')
        if hh==0: e('s_barrier')
        for i in range(8): e(f'v_cvt_pk_bf16_f32 v{b+i}, v{b+2*i}, v{b+2*i+1}')
        for ct in range(2):
            for h in range(2): e(f'ds_read_b64_tr_b16 {vr(b+8+4*ct+2*h,2)}, v{11-ct} offset:{hh*2048+h*512}')
        mfma(T,b,q,'0'); mfma(T,b+4,q+4)
        e(f's_nop 7\ns_nop 3\nv_add_f32 v8, 0x358637bd, v{T+8}\nv_rcp_f32 v8, v8\ns_nop 0')
        for i in range(8): e(f'v_mul_f32 v{T+i}, v{T+i}, v8')
        for i in range(4): e(f'v_cvt_pk_bf16_f32 v{q+i}, v{T+2*i}, v{T+2*i+1}')
        e('s_waitcnt lgkmcnt(0)\ns_nop 0')
        for ct in range(2): mfma(AC+16*ct,b+8+4*ct,q,'0' if hh==0 else None)
    reduce_out(AC,65536,12,40,HH)
    end(n)
def kernelC2():
    n='kc2_kernel'; begin(n,192)
    srd(32,'out'); srd(36,'wout'); srd(40,'ws')
    e(f'''s_and_b32 s49, s7, 1
    s_lshr_b32 s48, s7, 1
    s_lshl_b32 s57, s5, 1
    s_add_u32 s57, s57, s49
    s_mul_i32 s57, s57, 48
    s_mul_i32 s58, s48, 11
    s_add_u32 s57, s57, s58
    s_lshl_b32 s57, s57, 10
    s_add_u32 s57, s57, {UU}
    v_lshlrev_b32 v6, 4, v2''')
    wdma(11)
    for k in range(11):
        e(f'buffer_load_dwordx4 {vr(16+4*k,4)}, v6, s[40:43], s57 offen offset:{(k&3)*1024}')
        if k&3==3: e('s_add_u32 s57, s57, 4096')
    resload(40,HH,12)
    tr_base(11,8,9,0,4)
    e(f's_mul_i32 s56, s48, 22528\nv_add_u32 v11, s56, v11\nv_xor_b32 v10, 64, v11\ns_waitcnt vmcnt(12)\ns_barrier')
    AC=152
    for k in range(11):
        for ct in range(2):
            for h in range(2): e(f'ds_read_b64_tr_b16 {vr(64+8*k+4*ct+2*h,2)}, v{11-ct} offset:{k*2048+h*1024}')
    for k in range(11):
        e(f's_waitcnt vmcnt({11-k}) lgkmcnt({min(15,4*(10-k))})')
        for ct in range(2): mfma(AC+16*ct,64+8*k+4*ct,16+4*k,'0' if k==0 else None)
    reduce_out(AC,90112,12,32,0)
    end(n)
def kernelC1():
    n='kc1_kernel'; begin(n,144)
    srd(32,'bsp'); srd(36,'wsp'); srd(40,'ws')
    e(f'''s_and_b32 s49, s7, 1
    s_lshr_b32 s48, s7, 1
    s_lshr_b32 s50, s7, 2
    s_and_b32 s51, s7, 3
    s_mul_i32 s52, s50, 20480
    s_mul_i32 s53, s51, 3072
    s_add_u32 s54, s52, s53
    s_lshl_b32 s55, s51, 11
    s_add_u32 s55, s55, s52
    s_add_u32 s55, s55, 12288
    s_mul_i32 s56, s50, 98304
    s_mul_i32 s57, s6, 12288
    s_add_u32 s56, s56, s57
    s_add_u32 s56, s56, s53
    s_add_u32 s56, s56, {Z2T}
    v_lshlrev_b32 v5, 4, v2
    s_lshl_b32 s57, s5, 18
    s_lshl_b32 s58, s51, 16
    s_add_u32 s57, s57, s58
    s_lshl_b32 s58, s50, 7
    s_add_u32 s57, s57, s58
    v_lshrrev_b32 v6, 3, v2
    v_lshlrev_b32 v6, 12, v6
    v_lshrrev_b32 v7, 4, v2
    v_and_b32 v8, 7, v2
    v_xor_b32 v7, v7, v8
    v_xor_b32 v8, 4, v7
    v_lshl_add_u32 v7, v7, 4, v6
    v_lshl_add_u32 v8, v8, 4, v6
    v_add_u32 v8, {8*4096-1024}, v8''')
    def dma(st):
        sl=(st&3)*40960
        e(f's_add_u32 m0, s54, {sl}\ns_add_u32 s58, s56, {st*2*98304}')
        for i in range(3): e(f'buffer_load_dwordx4 v5, s[40:43], s58 offen offset:{i*1024} lds')
        e(f'''s_add_u32 m0, s55, {sl}
        s_add_u32 s58, s57, {st*256}
        buffer_load_dwordx4 v7, s[36:39], s58 offen lds
        buffer_load_dwordx4 v8, s[36:39], s58 offen offset:1024 lds''')
    e(f'''s_lshl_b32 s59, s5, 7
    s_lshl_b32 s60, s50, 6
    s_add_u32 s59, s59, s60
    v_lshlrev_b32 v10, 1, v3
    buffer_load_ushort v9, v10, s[32:35], s59 offen
    s_lshl_b32 s59, s5, 1
    s_add_u32 s59, s59, s50
    s_mul_i32 s59, s59, 48
    s_mul_i32 s60, s6, 6
    s_add_u32 s59, s59, s60
    s_lshl_b32 s59, s59, 10
    s_mul_i32 s60, s51, 3''')
    for i in range(3):
        e(f'''s_add_u32 s61, s60, {i}
        s_lshr_b32 s62, s61, 1
        s_lshl_b32 s62, s62, 10
        s_and_b32 s61, s61, 1
        s_lshl_b32 s61, s61, 3
        s_add_u32 s62, s62, s61
        s_add_u32 s{64+i}, s62, s59
        s_add_u32 s62, s{64+i}, {Z1}
        s_add_u32 s{64+i}, s{64+i}, {UU}
        buffer_load_dwordx2 {vr(128+2*i,2)}, v5, s[40:43], s62 offen''')
    for st in range(4): dma(st)
    e(f'''s_lshl_b32 s59, s48, 1
    v_bfe_u32 v10, v3, 1, 3
    v_xor_b32 v10, v10, v4
    v_xor_b32 v10, s59, v10
    v_lshlrev_b32 v10, 4, v10
    v_lshl_add_u32 v10, v3, 7, v10
    s_lshl_b32 s59, s49, 12
    s_add_u32 s59, s59, 12288
    v_add_u32 v134, s59, v10
    v_add_u32 v11, 40960, v10
    v_add_u32 v12, 81920, v10
    v_add_u32 v13, 122880, v10
    v_add_u32 v135, 40960, v134
    v_add_u32 v136, 81920, v134
    v_add_u32 v137, 122880, v134''')
    AC=80
    def reads(st):
        o=(st&1)*32; sl=st&3
        for sb in range(2):
            e(f'ds_read_b128 {vr(16+o+16*sb+12,4)}, v{134+sl} offset:{sb*20480}')
            for t in range(3): e(f'ds_read_b128 {vr(16+o+16*sb+4*t,4)}, v{10+sl} offset:{sb*20480+t*4096}')
    def mm(st):
        o=(st&1)*32
        for sb in range(2):
            for t in range(3): mfma(AC+16*t,16+o+16*sb+4*t,16+o+16*sb+12,'0' if st==0 and sb==0 else None)
    for st in range(16):
        vm=15 if st==0 else min(10,5*(15-st))
        e(f's_waitcnt vmcnt({vm}) lgkmcnt(0)\ns_barrier')
        reads(st)
        if st>=1 and st+3<16: dma(st+3)
        if st>=1: mm(st-1)
    e('s_waitcnt lgkmcnt(0)')
    mm(15)
    e(f'''s_mul_i32 s59, s7, 12288
    v_add_u32 v10, s59, v5
    s_mul_i32 s59, s50, 12288
    s_add_u32 s59, s59, s53
    v_add_u32 v11, s59, v5
    v_add_u32 v12, 49152, v11
    v_lshlrev_b32 v9, 16, v9
    s_nop 7
    s_barrier''')
    for i in range(12): e(f'ds_write_b128 v10, {vr(AC+4*i,4)} offset:{i*1024}')
    e('s_waitcnt lgkmcnt(0)\ns_barrier')
    for i in range(3):
        for k in range(4): e(f'ds_read_b128 {vr(16+16*i+4*k,4)}, v{11+(k>>1)} offset:{(k&1)*24576+i*1024}')
    for i in range(3):
        b=16+16*i
        e(f's_waitcnt lgkmcnt({4*(2-i)})')
        for j in range(4): e(f'v_pk_add_f32 {vr(b+2*j,2)}, {vr(b+2*j,2)}, {vr(b+8+2*j,2)}')
        for j in range(2): e(f'v_pk_add_f32 {vr(b+2*j,2)}, {vr(b+2*j,2)}, {vr(b+4+2*j,2)}')
        for j in range(2): e(f'v_lshlrev_b32 v{b+4+2*j}, 16, v{128+2*i+j}\nv_and_b32 v{b+5+2*j}, 0xffff0000, v{128+2*i+j}')
        for j in range(4): e(f'v_add_f32 v{b+j}, v{b+j}, v9')
        for j in range(4): e(f'v_mul_f32 v{b+j}, v{b+j}, v{b+4+j}')
        e(f'v_cvt_pk_bf16_f32 v{b+8}, v{b}, v{b+1}\nv_cvt_pk_bf16_f32 v{b+9}, v{b+2}, v{b+3}')
        e(f'buffer_store_dwordx2 {vr(b+8,2)}, v5, s[40:43], s{64+i} offen')
    end(n)
def build(path):
    kernelA(); kernelB1(); kernelB2(); kernelC1(); kernelC2()
    ref=open('sequential_preLN__linear_kernel_hedgehog__mixer_gmlp__prompt.s.ref').read().split('\n')
    hd=[l for l in ref if l.startswith(';') and '@launch' not in l]
    for nm,b,l in (('ka',768,163840),('kb1',512,135168),('kb2',768,163840),('kc1',512,163840),('kc2',512,159744)):
        hd.append(f'; @launch kernel={nm}_kernel grid=(256,1,1) block=({b},1,1) lds={l}')
    hd+=['.amdgcn_target "amdgcn-amd-amdhsa--gfx950"','.text']
    tl=['.section .rodata,"a"']
    for nm,vg in KD:
        tl.append(f'''.p2align 6
.amdhsa_kernel {nm}
  .amdhsa_next_free_vgpr {vg}
  .amdhsa_next_free_sgpr 102
  .amdhsa_accum_offset {(vg+3)//4*4}
  .amdhsa_group_segment_fixed_size 0
  .amdhsa_kernarg_size 96
  .amdhsa_user_sgpr_count 2
  .amdhsa_user_sgpr_kernarg_segment_ptr 1
  .amdhsa_system_sgpr_workgroup_id_x 1
.end_amdhsa_kernel''')
    open(path,'w').write('\n'.join(hd+L+tl)+'\n')
if __name__=='__main__':
    import sys
    build(sys.argv[1] if len(sys.argv)>1 else 'sequential_preLN__linear_kernel_hedgehog__mixer_gmlp__prompt.s')
```

```python
L=[]
import os
STAMP=int(os.environ.get('STAMP','0'))
def e(s):
    for ln in s.strip('\n').split('\n'):
        if STAMP and ln.strip()=='s_endpgm': dump()
        L.append('  '+ln.strip())
def stamp(i):
    if STAMP: e(f's_memtime s[{70+2*i}:{71+2*i}]\ns_waitcnt lgkmcnt(0)')
def dump():
    stamp(14)
    e(f'''s_memrealtime s[100:101]
    s_mov_b64 exec, -1
    s_lshl_b32 s68, s2, 4
    s_add_u32 s68, s68, s7
    s_lshl_b32 s68, s68, 6
    s_add_u32 s68, s68, {(24<<20)+(len(KD)-1)*(1<<18)}
    s_waitcnt lgkmcnt(0)
    v_mov_b32 v0, 0''')
    for i in range(16): e(f'v_mov_b32 v1, s{70+2*i}\nbuffer_store_dword v1, v0, s[40:43], s68 offen offset:{4*i}')
def lab(s): L.append(s+':')
MB=1<<20
KV,PHIQ,HH,Z1,Z2T,UU,STATS=0,1*MB,5*MB,8*MB,12*MB,16*MB,20*MB
SZ={'x':2097152,'wqkv':1572864,'wphi':16384,'wo':524288,'win':1409024,'wsp':8388608,'bsp':4096,'wout':704512,'out':2097152,'dbg':256,'ws':268435456}
PT={'x':8,'wqkv':10,'wphi':12,'wo':14,'win':18,'wsp':20,'bsp':22,'wout':24,'out':26,'dbg':28,'ws':30}
KD=[]
MAP18='''s_lshl_b32 s5, s3, 2
    s_lshr_b32 s6, s4, 3
    s_add_u32 s5, s5, s6
    s_and_b32 s6, s4, 7'''
MAP24='''s_lshr_b32 s5, s3, 1
    s_lshl_b32 s5, s5, 3
    s_lshr_b32 s6, s4, 2
    s_add_u32 s5, s5, s6
    s_and_b32 s6, s3, 1
    s_lshl_b32 s6, s6, 2
    s_and_b32 s4, s4, 3
    s_add_u32 s6, s6, s4'''
M24=os.environ.get('M24','00000')
def begin(name,vg):
    m24=M24[len(KD)]=='1'
    KD.append((name,vg))
    L.append(f'.globl {name}\n.p2align 8\n.type {name},@function\n{name}:')
    e(f'''s_cmp_ge_u32 s2, 256
    s_cbranch_scc1 {name}_end
    s_load_dwordx16 s[8:23], s[0:1], 0
    s_load_dwordx8 s[24:31], s[0:1], 64
    s_and_b32 s3, s2, 7
    s_lshr_b32 s4, s2, 3
    '''+(MAP24 if m24 else MAP18)+f'''
    v_lshrrev_b32 v1, 6, v0
    v_and_b32 v2, 63, v0
    v_readfirstlane_b32 s7, v1
    v_and_b32 v3, 31, v0
    v_bfe_u32 v4, v0, 5, 1
    s_waitcnt lgkmcnt(0)''')
    if STAMP: e('s_memrealtime s[70:71]'); stamp(1)
def srd(r,n):
    e(f'''s_mov_b32 s{r}, s{PT[n]}
    s_mov_b32 s{r+1}, s{PT[n]+1}
    s_mov_b32 s{r+2}, {SZ[n]}
    s_mov_b32 s{r+3}, 0x00020000''')
def end(name):
    if STAMP: dump()
    lab(name+'_end'); L.append('  s_endpgm')
def vr(a,n): return f'v[{a}:{a+n-1}]'
def mfma(d,a,b,c=None):
    e(f'v_mfma_f32_32x32x16_bf16 {vr(d,16)}, {vr(a,4)}, {vr(b,4)}, '+(vr(d,16) if c is None else c))
def tr_base(dst,t1,t2,rowsh,himul,stride=128,swz=True,ctbit=None):
    e(f'''v_bfe_u32 v{t1}, v2, 2, 2
    v_mad_u32_u24 v{dst}, v4, {himul}, v{t1}
    v_mul_u32_u24 v{dst}, {stride}, v{dst}
    v_bfe_u32 v{t2}, v2, 4, 1
    v_lshlrev_b32 v{t2}, 5, v{t2}
    v_and_b32 v{t1}, 3, v2
    v_lshl_add_u32 v{t2}, v{t1}, 3, v{t2}''')
    if ctbit is not None: e(f'v_add_u32 v{t2}, {ctbit}, v{t2}')
    if swz:
        e(f'''v_bfe_u32 v{t1}, v2, 3, 1
        v_lshlrev_b32 v{t1}, 6, v{t1}
        v_xor_b32 v{t2}, v{t1}, v{t2}''')
    e(f'v_add_u32 v{dst}, v{dst}, v{t2}')
def red8(v,t):
    for m in ('quad_perm:[1,0,3,2]','quad_perm:[2,3,0,1]','row_half_mirror'):
        e(f's_nop 1\nv_add_f32_dpp v{v}, v{v}, v{v} {m} row_mask:0xf bank_mask:0xf')
ACC=112
def front(name,xs,xoff,stride,colbase,pre,substep):
    e(f'''s_cmp_ge_u32 s7, 6
    s_cselect_b32 s49, 1, 0
    s_mul_i32 s48, s49, 6
    s_sub_u32 s48, s7, s48
    s_lshr_b32 s51, s7, 2''')
    colbase()
    e(f'''s_lshl_b32 s52, s5, 16
    s_add_u32 s52, s52, {xoff}
    v_lshrrev_b32 v5, 3, v0
    v_and_b32 v6, 7, v0
    v_lshlrev_b32 v7, 10, v5
    v_lshl_add_u32 v7, v6, 4, v7
    s_cmp_ge_u32 s7, 8
    s_cbranch_scc1 {name}_nox''')
    for i in range(8): e(f'buffer_load_dwordx4 {vr(16+4*i,4)}, v7, s[{xs}:{xs+3}], s52 offen offset:{i*128}')
    lab(name+'_nox')
    e(f'''s_and_b32 s53, s7, 3
    s_lshl_b32 s54, s53, 11
    s_lshl_b32 s53, s53, 4
    v_lshrrev_b32 v8, 3, v2
    v_add_u32 v8, s53, v8
    v_mul_u32_u24 v8, {stride}, v8
    v_bfe_u32 v9, v2, 4, 1
    v_lshlrev_b32 v9, 2, v9
    v_and_b32 v10, 7, v2
    v_xor_b32 v9, v9, v10
    v_lshl_add_u32 v8, v9, 4, v8
    v_add_u32 v8, s50, v8
    v_add_u32 v9, {8*stride-1024}, v8
    s_add_u32 s54, s54, 65536''')
    cnt=[0]
    def dma(sts):
        cnt[0]+=1
        e(f's_cmp_lt_u32 s7, 8\ns_cbranch_scc1 {name}_d{cnt[0]}')
        for st in sts:
          for sb in range(3):
            e(f'''s_add_u32 m0, s54, {(st&3)*24576+sb*8192}
            s_mov_b32 s55, {st*64*stride+sb*substep}
            buffer_load_dwordx4 v8, s[36:39], s55 offen lds
            buffer_load_dwordx4 v9, s[36:39], s55 offen offset:1024 lds''')
        lab(f'{name}_d{cnt[0]}')
    pre(0)
    dma(range(2))
    pre(1)
    e(f'''s_cmp_ge_u32 s7, 8
    s_cbranch_scc1 {name}_noln
    s_waitcnt vmcnt(0)''')
    stamp(2)
    for i in range(32):
        e(f'v_lshlrev_b32 v{48+2*i}, 16, v{16+i}\nv_and_b32 v{49+2*i}, 0xffff0000, v{16+i}')
    e(f'v_pk_add_f32 v[12:13], v[48:49], v[50:51]\nv_pk_mul_f32 v[14:15], v[48:49], v[48:49]\nv_pk_fma_f32 v[14:15], v[50:51], v[50:51], v[14:15]')
    for i in range(2,32):
        p=vr(48+2*i,2); e(f'v_pk_add_f32 v[12:13], v[12:13], {p}\nv_pk_fma_f32 v[14:15], {p}, {p}, v[14:15]')
    e('v_add_f32 v12, v12, v13\nv_add_f32 v14, v14, v15')
    red8(12,0); red8(14,0)
    e(f'''v_mul_f32 v12, 0x3b000000, v12
    v_mul_f32 v14, 0x3b000000, v14
    v_fma_f32 v14, -v12, v12, v14
    v_max_f32 v14, 0, v14
    v_add_f32 v14, 0x3727c5ac, v14
    v_rsq_f32 v14, v14
    v_bfe_u32 v10, v5, 1, 3
    v_xor_b32 v10, v10, v6
    v_mul_f32 v12, v12, v14
    v_mov_b32 v15, v14
    v_mul_f32 v12, -1.0, v12
    v_lshlrev_b32 v10, 4, v10
    v_mov_b32 v13, v12
    v_lshl_add_u32 v10, v5, 7, v10''')
    for i in range(8):
        for j in range(4):
            p=vr(48+8*i+2*j,2); e(f'v_pk_fma_f32 {p}, {p}, v[14:15], v[12:13]')
        for j in range(4):
            e(f'v_cvt_pk_bf16_f32 v{16+4*i+j}, v{48+8*i+2*j}, v{49+8*i+2*j}')
        e(f'ds_write_b128 v10, {vr(16+4*i,4)} offset:{i*8192}')
    lab(name+'_noln'); stamp(3)
    e('s_and_b32 s56, s48, 1\ns_lshl_b32 s56, s56, 6')
    tr_base(11,5,6,0,8,ctbit='s56')
    e(f'''s_lshr_b32 s56, s48, 1
    s_lshl_b32 s56, s56, 13
    s_add_u32 s56, s56, 65536
    v_add_u32 v11, s56, v11
    v_add_u32 v10, 49152, v11
    s_lshl_b32 s56, s49, 12
    v_lshlrev_b32 v5, 7, v3
    v_add_u32 v5, s56, v5
    v_bfe_u32 v6, v3, 1, 3
    v_xor_b32 v6, v6, v4''')
    for ks in range(4):
        e(f'v_xor_b32 v7, {2*ks}, v6\nv_lshl_add_u32 v{12+ks}, v7, 4, v5')
    vm=[6,12,12,12,12,12,6,0]
    def reads(st,ks):
        o=(st&1)*32; sl=st&3
        base,so=(11,sl*24576) if sl<2 else (10,(sl-2)*24576)
        e(f'''ds_read_b64_tr_b16 {vr(16+o+4*ks,2)}, v{base} offset:{so+ks*2048}
        ds_read_b64_tr_b16 {vr(18+o+4*ks,2)}, v{base} offset:{so+ks*2048+512}
        ds_read_b128 {vr(32+o+4*ks,4)}, v{12+ks} offset:{st*8192}''')
    for st in range(8):
        e(f's_waitcnt vmcnt({vm[st]}) lgkmcnt(0)\ns_barrier')
        if st in (0,1,4,7): stamp({0:4,1:5,4:6,7:7}[st])
        if st>=1 and st+3<8: dma([st+3])
        o=((st-1)&1)*32
        for ks in range(4):
            if st>=1: mfma(ACC,16+o+4*ks,32+o+4*ks,'0' if (st==1 and ks==0) else None)
            reads(st,ks)
        if st==0: dma([2,3])
        if st==5: pre(2)
    for ks in range(4):
        e(f's_waitcnt lgkmcnt({9-3*ks})')
        mfma(ACC,48+4*ks,64+4*ks)
    stamp(8)
```

```python
from g1 import *
LOG2E=0x3fb8aa3b
def swapred(op,v,t):
    e(f'v_mov_b32 v{t}, v{v}\ns_nop 1\nv_permlane32_swap_b32 v{v}, v{t}\ns_nop 1\n{op} v{v}, v{v}, v{t}')
def softmax8(b,m,t):
    e(f'v_max3_f32 v{m}, v{b}, v{b+1}, v{b+2}\nv_max3_f32 v{m}, v{m}, v{b+3}, v{b+4}\nv_max3_f32 v{m}, v{m}, v{b+5}, v{b+6}\nv_max_f32 v{m}, v{m}, v{b+7}')
    swapred('v_max_f32',m,t)
    e(f'v_mul_f32 v{m}, s62, v{m}\nv_mov_b32 v{t}, v{m}')
    for i in range(4): e(f'v_pk_fma_f32 {vr(b+2*i,2)}, {vr(b+2*i,2)}, s[60:61], {vr(m,2)}')
    for i in range(8): e(f'v_exp_f32 v{b+i}, v{b+i}')
    e(f'v_pk_add_f32 {vr(m,2)}, {vr(b,2)}, {vr(b+2,2)}\nv_pk_add_f32 {vr(m,2)}, {vr(m,2)}, {vr(b+4,2)}\nv_pk_add_f32 {vr(m,2)}, {vr(m,2)}, {vr(b+6,2)}\nv_add_f32 v{m}, v{m}, v{t}')
    swapred('v_add_f32',m,t)
    e(f'v_rcp_f32 v{m}, v{m}\ns_nop 0\nv_mov_b32 v{t}, v{m}')
    for i in range(4): e(f'v_pk_mul_f32 {vr(b+2*i,2)}, {vr(b+2*i,2)}, {vr(m,2)}')
def kernelA():
    n='ka_kernel'; begin(n,152)
    srd(32,'x'); srd(36,'wqkv'); srd(40,'ws'); srd(44,'wphi'); srd(64,'dbg')
    def colbase(): e('s_lshl_b32 s50, s6, 7')
    def pre(ph):
        if ph==0:
            e(f'''s_cmp_lg_u32 s5, 0
            s_cbranch_scc1 {n}_nz
            s_cmp_lt_u32 s7, 8
            s_cbranch_scc1 {n}_nz
            s_lshl_b32 s56, s6, 2
            s_add_u32 s56, s56, s7
            s_sub_u32 s56, s56, 8
            s_mul_i32 s56, s56, 2176
            v_lshlrev_b32 v10, 4, v2
            v_mov_b32 v12, 0
            v_mov_b32 v13, 0
            v_mov_b32 v14, 0
            v_mov_b32 v15, 0''')
            for o in (0,1024,1152): e(f'buffer_store_dwordx4 v[12:15], v10, s[40:43], s56 offen offset:{o} sc0 sc1')
            lab(n+'_nz')
        elif ph==2:
            e(f'''s_cmp_lg_u32 s7, 8
            s_cbranch_scc1 {n}_wp
            s_mov_b32 m0, 65536
            s_lshl_b32 s56, s6, 11
            v_lshlrev_b32 v5, 4, v2
            buffer_load_dwordx4 v5, s[44:47], s56 offen lds
            buffer_load_dwordx4 v5, s[44:47], s56 offen offset:1024 lds''')
            lab(n+'_wp')
        else:
            e(f'''s_cmp_lg_u32 s5, 0
            s_cbranch_scc1 {n}_nf
            s_cmp_lt_u32 s7, 8
            s_cbranch_scc1 {n}_nf
            s_waitcnt vmcnt(0)
            s_lshl_b32 s56, s6, 2
            v_mov_b32 v12, 1
            v_mov_b32 v13, 0
            s_mov_b64 exec, 1
            buffer_atomic_add v12, v13, s[64:67], s56 offen sc1
            s_mov_b64 exec, -1''')
            lab(n+'_nf')
    front(n,32,0,3072,colbase,pre,1024)
    e(f'''s_mov_b32 s60, {LOG2E}
    s_mov_b32 s61, {LOG2E}
    s_mov_b32 s62, {LOG2E|0x80000000}
    v_bfe_u32 v5, v2, 4, 1
    v_mul_u32_u24 v5, 0x8000, v5
    v_lshl_or_b32 v5, v5, 16, v5''')
    e(f'''v_bfe_u32 v6, v2, 2, 2
    v_lshl_add_u32 v6, v4, 2, v6
    v_lshlrev_b32 v6, 5, v6
    v_and_b32 v7, 3, v2
    v_lshl_add_u32 v6, v7, 3, v6
    s_and_b32 s56, s48, 1
    s_lshl_b32 s56, s56, 10
    s_add_u32 s56, s56, 65536
    v_add_u32 v6, s56, v6''')
    for i in range(4): e(f'ds_read_b64_tr_b16 {vr(128+2*i,2)}, v6 offset:{i*256}')
    e('s_waitcnt lgkmcnt(0)')
    for i in range(8): e(f'v_xor_b32 v{128+i}, v5, v{128+i}')
    for i in range(8): e(f'v_cvt_pk_bf16_f32 v{16+i}, v{ACC+2*i}, v{ACC+2*i+1}')
    e(f'''s_lshl_b32 s56, s49, 5
    v_add_u32 v6, s56, v3
    s_and_b32 s57, s48, 1
    s_cmp_ge_u32 s48, 4
    s_cbranch_scc1 {n}_v
    s_cmp_ge_u32 s48, 2
    s_cbranch_scc1 {n}_sm
    s_barrier''')
    lab(n+'_sm')
    mfma(32,128,16,'0'); mfma(48,132,20,'0')
    e('s_nop 7\ns_nop 3')
    softmax8(32,24,25); softmax8(40,26,27); softmax8(48,24,25); softmax8(56,26,27)
    for i in range(16): e(f'v_cvt_pk_bf16_f32 v{64+i}, v{32+2*i}, v{33+2*i}')
    stamp(9)
    e(f'''s_cmp_ge_u32 s48, 2
    s_cbranch_scc1 {n}_k
    s_lshl_b32 s56, s5, 1
    s_add_u32 s56, s56, s49
    s_lshl_b32 s56, s56, 16
    s_lshl_b32 s58, s6, 13
    s_add_u32 s56, s56, s58
    s_lshl_b32 s58, s57, 12
    s_add_u32 s56, s56, s58
    s_add_u32 s56, s56, {PHIQ}
    v_lshlrev_b32 v7, 4, v2''')
    for i in range(4): e(f'buffer_store_dwordx4 {vr(64+4*i,4)}, v7, s[40:43], s56 offen offset:{i*1024}')
    e('s_endpgm')
    lab(n+'_k')
    e(f'''v_mul_u32_u24 v7, 272, v6
    v_lshl_add_u32 v7, v4, 5, v7
    s_lshl_b32 s56, s57, 7
    v_add_u32 v7, s56, v7''')
    for i in range(4): e(f'ds_write_b128 v7, {vr(64+4*i,4)} offset:{(i>>1)*64+(i&1)*16}')
    e(f's_waitcnt lgkmcnt(0)\ns_barrier\ns_endpgm')
    lab(n+'_v')
    e(f'''v_mul_u32_u24 v7, 144, v6
    v_lshl_add_u32 v7, v4, 4, v7
    s_lshl_b32 s56, s57, 6
    v_add_u32 v7, s56, v7
    ds_write_b128 v7, v[16:19] offset:17408
    ds_write_b128 v7, v[20:23] offset:17440
    s_lshl_b32 s58, s49, 1
    s_add_u32 s58, s58, s57
    s_lshl_b32 s56, s6, 2
    v_mov_b32 v9, 0
    s_mov_b32 s59, 0''')
    stamp(9)
    lab(n+'_poll')
    e(f'''buffer_load_dword v8, v9, s[64:67], s56 offen sc0 sc1
    s_add_u32 s59, s59, 1
    s_waitcnt vmcnt(0)
    v_readfirstlane_b32 s63, v8
    s_cmp_gt_u32 s59, 0x4000
    s_cbranch_scc1 {n}_go
    s_cmp_lt_u32 s63, 4
    s_cbranch_scc1 {n}_poll''')
    lab(n+'_go'); stamp(10)
    tr_base(10,5,6,0,8,stride=272,swz=False)
    e(f'''v_bfe_u32 v5, v2, 2, 2
    v_lshl_add_u32 v11, v4, 3, v5
    v_mul_u32_u24 v11, 144, v11
    v_and_b32 v5, 3, v2
    v_lshl_add_u32 v11, v5, 3, v11
    s_lshl_b32 s57, s58, 6
    v_add_u32 v10, s57, v10
    s_lshl_b32 s57, s58, 5
    v_add_u32 v11, s57, v11
    v_cmp_lt_u32 vcc, 15, v3
    v_mov_b32 v12, 0x3f803f80
    s_waitcnt lgkmcnt(0)
    s_barrier''')
    for ks in range(4):
        for h in range(2):
            e(f'ds_read_b64_tr_b16 {vr(16+4*ks+2*h,2)}, v11 offset:{17408+(ks*16+4*h)*144}')
            e(f'ds_read_b64_tr_b16 {vr(32+4*ks+2*h,2)}, v10 offset:{(ks*16+4*h)*272}')
    e('s_waitcnt lgkmcnt(0)')
    for i in range(16): e(f'v_cndmask_b32 v{16+i}, v{16+i}, v12, vcc')
    e('s_nop 1')
    stamp(11)
    for ks in range(4): mfma(48,16+4*ks,32+4*ks,'0' if ks==0 else None)
    e(f'''s_add_u32 s56, s56, s58
    s_mul_i32 s56, s56, 2176
    v_lshlrev_b32 v7, 2, v3
    v_lshl_add_u32 v7, v4, 9, v7
    s_nop 7
    s_nop 3''')
    for r in range(8): e(f'buffer_atomic_add_f32 v{48+r}, v7, s[40:43], s56 offen offset:{((r&3)+8*(r>>2))*128} sc1')
    e('s_mov_b64 exec, 0xffffffff\nbuffer_atomic_add_f32 v56, v7, s[40:43], s56 offen offset:2048 sc1')
    end(n)
import struct,math
def fb(x): return hex(struct.unpack('<I',struct.pack('<f',x))[0])
def kernelB2():
    n='kb2_kernel'; begin(n,152)
    srd(36,'win'); srd(40,'ws')
    def colbase(): e('''s_lshr_b32 s56, s6, 2
        s_mul_i32 s50, s56, 1376
        s_and_b32 s56, s6, 3
        s_mul_i32 s56, s56, 384
        s_add_u32 s50, s50, s56''')
    front(n,40,HH,2752,colbase,lambda ph:None,128)
    k0=-2*0.7978845608028654*math.log2(math.e)
    e(f'''s_mov_b32 s60, {fb(k0*0.044715)}
    s_mov_b32 s61, s60
    s_mov_b32 s62, 1.0
    s_mov_b32 s63, 1.0
    v_mov_b32 v8, {fb(k0)}
    v_mov_b32 v9, {fb(k0)}
    s_and_b32 s57, s6, 3
    s_mul_i32 s57, s57, 6
    s_add_u32 s57, s57, s48
    s_lshl_b32 s58, s5, 1
    s_add_u32 s58, s58, s49
    s_nop 7
    s_nop 1''')
    A=ACC
    P=lambda b,i: vr(b+2*i,2)
    for i in range(8): e(f'v_pk_mul_f32 {P(16,i)}, {P(A,i)}, {P(A,i)}')
    for i in range(8): e(f'v_pk_fma_f32 {P(16,i)}, {P(16,i)}, s[60:61], v[8:9]')
    for i in range(8): e(f'v_pk_mul_f32 {P(16,i)}, {P(16,i)}, {P(A,i)}')
    for i in range(16): e(f'v_exp_f32 v{16+i}, v{16+i}')
    for i in range(8): e(f'v_pk_add_f32 {P(16,i)}, {P(16,i)}, s[62:63]')
    for i in range(16): e(f'v_rcp_f32 v{16+i}, v{16+i}')
    for i in range(8): e(f'v_pk_mul_f32 {P(A,i)}, {P(16,i)}, {P(A,i)}')
    e(f's_cmp_ge_u32 s6, 4\ns_cbranch_scc1 {n}_z2')
    for i in range(8): e(f'v_cvt_pk_bf16_f32 v{16+i}, v{A+2*i}, v{A+2*i+1}')
    e(f'''s_mul_i32 s56, s58, 24
    s_add_u32 s56, s56, s57
    s_lshl_b32 s56, s56, 11
    s_add_u32 s56, s56, {Z1}
    v_lshlrev_b32 v7, 4, v2
    buffer_store_dwordx4 v[16:19], v7, s[40:43], s56 offen
    buffer_store_dwordx4 v[20:23], v7, s[40:43], s56 offen offset:1024
    s_endpgm''')
    lab(n+'_z2')
    e(f's_cmp_lt_u32 s57, 21\ns_cbranch_scc1 {n}_nm')
    for i in range(8,16): e(f'v_mov_b32 v{A+i}, 0')
    e(f's_cmp_lt_u32 s57, 22\ns_cbranch_scc1 {n}_nm')
    for i in range(8): e(f'v_mov_b32 v{A+i}, 0')
    lab(n+'_nm')
    e(f'v_pk_add_f32 v[16:17], {vr(A,2)}, {vr(A+2,2)}\nv_pk_mul_f32 v[18:19], {vr(A,2)}, {vr(A,2)}\nv_pk_fma_f32 v[18:19], {vr(A+2,2)}, {vr(A+2,2)}, v[18:19]')
    for i in range(2,8):
        p=vr(A+2*i,2); e(f'v_pk_add_f32 v[16:17], v[16:17], {p}\nv_pk_fma_f32 v[18:19], {p}, {p}, v[18:19]')
    e('v_add_f32 v16, v16, v17\nv_add_f32 v17, v18, v19')
    swapred('v_add_f32',16,18); swapred('v_add_f32',17,19)
    e(f'''s_lshl_b32 s56, s49, 5
    v_add_u32 v6, s56, v3
    v_lshlrev_b32 v6, 3, v6
    s_lshl_b32 s56, s48, 9
    v_add_u32 v7, s56, v6
    ds_write_b64 v7, v[16:17]
    s_waitcnt lgkmcnt(0)
    s_barrier
    s_cmp_lg_u32 s7, 0
    s_cbranch_scc1 {n}_w
    v_lshlrev_b32 v7, 3, v2''')
    for c in range(6): e(f'ds_read_b64 {vr(16+2*c,2)}, v7 offset:{c*512}')
    e(f'''s_lshl_b32 s56, s5, 11
    s_add_u32 s56, s56, {STATS}
    s_and_b32 s59, s6, 3
    s_lshl_b32 s59, s59, 9
    s_add_u32 s59, s59, s56
    s_waitcnt lgkmcnt(0)''')
    for c in range(1,6): e(f'v_pk_add_f32 v[16:17], v[16:17], {vr(16+2*c,2)}')
    e(f'buffer_store_dwordx2 v[16:17], v7, s[40:43], s59 offen sc0 sc1\ns_mov_b32 s59, 0')
    stamp(9)
    lab(n+'_poll')
    for c in range(4): e(f'buffer_load_dwordx2 {vr(20+2*c,2)}, v7, s[40:43], s56 offen offset:{c*512} sc0 sc1')
    e(f'''s_add_u32 s59, s59, 1
    s_waitcnt vmcnt(0)
    v_max_u32 v18, v21, v23
    v_max3_u32 v18, v18, v25, v27
    v_cmp_eq_u32 vcc, -1, v18
    s_cmp_gt_u32 s59, 0x4000
    s_cbranch_scc1 {n}_go
    s_nop 1
    s_cbranch_vccnz {n}_poll''')
    lab(n+'_go'); stamp(10)
    e(f'''v_pk_add_f32 v[20:21], v[20:21], v[22:23]
    v_pk_add_f32 v[24:25], v[24:25], v[26:27]
    v_pk_add_f32 v[20:21], v[20:21], v[24:25]
    v_mul_f32 v20, {fb(1/688)}, v20
    v_mul_f32 v21, {fb(1/688)}, v21
    v_fma_f32 v21, -v20, v20, v21
    v_max_f32 v21, 0, v21
    v_add_f32 v21, 0x3727c5ac, v21
    v_rsq_f32 v21, v21
    s_nop 0
    v_mul_f32 v20, v20, v21
    v_mul_f32 v20, -1.0, v20
    ds_write_b64 v7, v[20:21] offset:4096
    s_waitcnt lgkmcnt(0)''')
    lab(n+'_w')
    e(f'''s_barrier
    ds_read_b64 v[16:17], v6 offset:4096
    s_mul_i32 s56, s7, 2560
    s_add_u32 s56, s56, 8192
    v_mul_u32_u24 v7, 80, v3
    v_lshl_add_u32 v7, v4, 3, v7
    v_add_u32 v7, s56, v7''')
    tr_base(10,8,9,0,8,stride=80,swz=False,ctbit='s56')
    e(f'''s_mul_i32 s56, s5, 98304
    s_lshl_b32 s59, s57, 12
    s_add_u32 s56, s56, s59
    s_add_u32 s56, s56, {Z2T}
    s_lshl_b32 s59, s49, 2
    v_bfe_u32 v8, v3, 1, 3
    v_xor_b32 v8, v8, v4
    v_xor_b32 v8, s59, v8
    v_xor_b32 v9, 2, v8
    v_lshlrev_b32 v11, 7, v3
    v_lshl_add_u32 v8, v8, 4, v11
    v_lshl_add_u32 v9, v9, 4, v11
    s_waitcnt lgkmcnt(0)''')
    for i in range(16): e(f'v_fma_f32 v{A+i}, v{A+i}, v17, v16')
    for i in range(8): e(f'v_cvt_pk_bf16_f32 v{20+i}, v{A+2*i}, v{A+2*i+1}')
    for q in range(4): e(f'ds_write_b64 v7, {vr(20+2*q,2)} offset:{q*16}')
    e('s_waitcnt lgkmcnt(0)')
    for m in range(2):
        for h in range(2): e(f'ds_read_b64_tr_b16 {vr(32+4*m+2*h,2)}, v10 offset:{(m*16+4*h)*80}')
    e(f'''s_waitcnt lgkmcnt(0)
    buffer_store_dwordx4 v[32:35], v8, s[40:43], s56 offen
    buffer_store_dwordx4 v[36:39], v9, s[40:43], s56 offen''')
    end(n)
```

```python
from g2 import *
def wdma(nin):
    e(f'''s_mul_i32 s50, s7, {nin*8192}
    s_lshl_b32 s51, s6, 7
    s_add_u32 s50, s50, s51
    s_mul_i32 s51, s7, {nin*1024}
    v_lshrrev_b32 v8, 3, v2
    v_lshlrev_b32 v8, 10, v8
    v_bfe_u32 v9, v2, 4, 1
    v_lshlrev_b32 v9, 2, v9
    v_and_b32 v10, 7, v2
    v_xor_b32 v9, v9, v10
    v_lshl_add_u32 v8, v9, 4, v8''')
    for i in range(nin):
        e(f'''s_add_u32 m0, s51, {i*1024}
        s_add_u32 s52, s50, {i*8192}
        buffer_load_dwordx4 v8, s[36:39], s52 offen lds''')
def resload(rs,off,dst):
    e(f'''s_lshl_b32 s53, s5, 16
    s_lshl_b32 s54, s6, 7
    s_add_u32 s53, s53, s54
    s_add_u32 s54, s53, {off}
    v_lshrrev_b32 v5, 3, v0
    v_and_b32 v6, 7, v0
    v_lshlrev_b32 v7, 10, v5
    v_lshl_add_u32 v7, v6, 4, v7
    buffer_load_dwordx4 {vr(dst,4)}, v7, s[{rs}:{rs+3}], s54 offen''')
def reduce_out(acc,RB,res,os,ooff):
    e(f'''s_mul_i32 s56, s48, 17408
    s_mul_i32 s57, s49, {32*272}
    s_add_u32 s56, s56, s57
    s_add_u32 s56, s56, {RB}
    v_mul_u32_u24 v8, 272, v3
    v_lshl_add_u32 v8, v4, 4, v8
    v_add_u32 v8, s56, v8
    v_mul_u32_u24 v9, 272, v5
    v_lshl_add_u32 v9, v6, 5, v9
    v_add_u32 v9, {RB}, v9
    s_add_u32 s54, s53, {ooff}
    s_nop 7''')
    for ct in range(2):
        for q in range(4): e(f'ds_write_b128 v8, {vr(acc+16*ct+4*q,4)} offset:{ct*128+q*32}')
    stamp(11)
    e('s_waitcnt lgkmcnt(0)\ns_barrier'); stamp(12)
    for k in range(4):
        for h in range(2): e(f'ds_read_b128 {vr(16+8*k+4*h,4)}, v9 offset:{k*17408+h*16}')
    for i in range(4): e(f'v_lshlrev_b32 v{48+2*i}, 16, v{res+i}\nv_and_b32 v{49+2*i}, 0xffff0000, v{res+i}')
    e('s_waitcnt lgkmcnt(0)')
    for k in (0,2):
        for i in range(4): e(f'v_pk_add_f32 {vr(16+8*k+2*i,2)}, {vr(16+8*k+2*i,2)}, {vr(24+8*k+2*i,2)}')
    for i in range(4): e(f'v_pk_add_f32 {vr(16+2*i,2)}, {vr(16+2*i,2)}, {vr(32+2*i,2)}')
    for i in range(4): e(f'v_pk_add_f32 {vr(16+2*i,2)}, {vr(16+2*i,2)}, {vr(48+2*i,2)}')
    for i in range(4): e(f'v_cvt_pk_bf16_f32 v{24+i}, v{16+2*i}, v{17+2*i}')
    e(f'buffer_store_dwordx4 v[24:27], v7, s[{os}:{os+3}], s54 offen')
def kernelB1():
    n='kb1_kernel'; begin(n,164)
    srd(32,'x'); srd(36,'wo'); srd(40,'ws')
    e(f'''s_and_b32 s49, s7, 1
    s_lshr_b32 s48, s7, 1
    v_lshrrev_b32 v5, 3, v2
    v_and_b32 v6, 7, v2
    v_xor_b32 v6, v5, v6
    v_lshlrev_b32 v5, 7, v5
    v_lshl_add_u32 v5, v6, 4, v5
    s_lshl_b32 s56, s7, 13
    s_add_u32 m0, s56, 65536
    s_lshl_b32 s57, s5, 1
    s_add_u32 s57, s57, s49
    s_lshl_b32 s57, s57, 16
    s_lshl_b32 s58, s48, 14
    s_add_u32 s57, s57, s58
    s_add_u32 s57, s57, {PHIQ}
    v_lshlrev_b32 v6, 4, v2''')
    for i in range(4): e(f'buffer_load_dwordx4 v5, s[40:43], s56 offen offset:{i*1024} lds')
    e('s_add_u32 m0, s56, 69632\ns_add_u32 s56, s56, 4096')
    for i in range(4): e(f'buffer_load_dwordx4 v5, s[40:43], s56 offen offset:{i*1024} lds')
    e(f'''s_and_b32 s56, s7, 3
    s_lshl_b32 s56, s56, 10
    s_add_u32 s56, s56, 65536
    s_add_u32 m0, s56, 65536
    s_nop 0
    buffer_load_dwordx4 v5, s[40:43], s56 offen lds''')
    def pq(hh):
        for f in range(2): e(f'buffer_load_dwordx4 {vr(16+8*hh+4*f,4)}, v160, s[40:43], s57 offen offset:{(hh&1)*2048+f*1024}')
        if hh&1: e('s_add_u32 s57, s57, 4096')
    wdma(8)
    e('v_mov_b32 v160, v6')
    pq(0); pq(1)
    resload(32,0,12)
    tr_base(11,8,9,0,8)
    e(f's_lshl_b32 s56, s48, 14\nv_add_u32 v11, s56, v11\nv_xor_b32 v10, 64, v11')
    AC=112; T=144
    e(f'''v_min_u32 v8, 16, v3
    s_mul_i32 s56, s48, 136
    v_add_u32 v8, s56, v8
    v_lshlrev_b32 v9, 2, v4
    s_waitcnt vmcnt(5)''')
    stamp(2); e('s_barrier')
    def rd(hh):
        b=80+16*(hh&1)
        e(f'''v_add_u32 v1, {17*hh}, v8
        v_and_b32 v0, 7, v1
        v_xor_b32 v0, v0, v9
        v_lshlrev_b32 v1, 7, v1
        v_lshl_add_u32 v0, v0, 4, v1
        v_add_u32 v0, 65536, v0''')
        for j in range(4):
            if j: e(f'v_xor_b32 v1, {16*j}, v0')
            e(f'ds_read_b128 {vr(b+4*j,4)}, v{1 if j else 0}')
    rd(0); pq(2); pq(3)
    for hh in range(8):
        b=80+16*(hh&1); q=16+8*hh
        e(f's_waitcnt vmcnt({[7,6,6,6,6,4,2,0][hh]}) lgkmcnt(0)')
        stamp(3+hh)
        for i in range(8): e(f'v_cvt_pk_bf16_f32 v{b+i}, v{b+2*i}, v{b+2*i+1}')
        for ct in range(2):
            for h in range(2): e(f'ds_read_b64_tr_b16 {vr(b+8+4*ct+2*h,2)}, v{11-ct} offset:{hh*2048+h*512}')
        mfma(T,b,q,'0'); mfma(T,b+4,q+4)
        if hh<4: pq(hh+4)
        if hh<7: rd(hh+1)
        else: e('s_nop 7')
        e(f's_nop 3\nv_add_f32 v1, 0x358637bd, v{T+8}\nv_rcp_f32 v0, v1\ns_nop 0\nv_mov_b32 v1, v0')
        for i in range(4): e(f'v_pk_mul_f32 {vr(T+2*i,2)}, {vr(T+2*i,2)}, v[0:1]')
        for i in range(4): e(f'v_cvt_pk_bf16_f32 v{q+i}, v{T+2*i}, v{T+2*i+1}')
        e(f's_waitcnt lgkmcnt({4 if hh<7 else 0})\ns_nop 0')
        for ct in range(2): mfma(AC+16*ct,b+8+4*ct,q,'0' if hh==0 else None)
    pf('win',60,0,6,2,161)
    e('s_barrier')
    reduce_out(AC,65536,12,40,HH)
    e(f'''s_cmp_lg_u32 s7, 0
    s_cbranch_scc1 {n}_ns
    s_cmp_ge_u32 s6, 4
    s_cbranch_scc1 {n}_ns
    s_lshl_b32 s56, s5, 11
    s_lshl_b32 s57, s6, 9
    s_add_u32 s56, s56, s57
    s_add_u32 s56, s56, {STATS}
    v_lshlrev_b32 v8, 3, v2
    v_mov_b32 v10, -1
    v_mov_b32 v11, -1
    buffer_store_dwordx2 v[10:11], v8, s[40:43], s56 offen''')
    lab(n+'_ns')
    end(n)
def kernelC2():
    n='kc2_kernel'; begin(n,192)
    srd(32,'out'); srd(36,'wout'); srd(40,'ws')
    e(f'''s_and_b32 s49, s7, 1
    s_lshr_b32 s48, s7, 1
    s_lshl_b32 s57, s5, 1
    s_add_u32 s57, s57, s49
    s_mul_i32 s57, s57, 48
    s_mul_i32 s58, s48, 11
    s_add_u32 s57, s57, s58
    s_lshl_b32 s57, s57, 10
    s_add_u32 s57, s57, {UU}
    v_lshlrev_b32 v6, 4, v2''')
    wdma(11)
    e('v_mov_b32 v184, v6')
    def ul(k):
        e(f'buffer_load_dwordx4 {vr(16+4*k,4)}, v184, s[40:43], s57 offen offset:{(k&3)*1024}')
        if k&3==3: e('s_add_u32 s57, s57, 4096')
    ul(0); ul(1)
    resload(40,HH,12)
    tr_base(11,8,9,0,4)
    e(f's_mul_i32 s56, s48, 22528\nv_add_u32 v11, s56, v11\nv_xor_b32 v10, 64, v11\ns_waitcnt vmcnt(3)'); stamp(2); e('s_barrier'); stamp(3)
    AC=152
    def rd(k):
        for ct in range(2):
            for h in range(2): e(f'ds_read_b64_tr_b16 {vr(64+8*k+4*ct+2*h,2)}, v{11-ct} offset:{k*2048+h*1024}')
    for k in range(3): rd(k)
    for k in range(2,6): ul(k)
    for k in range(11):
        if k+6<11: ul(k+6)
        if k+3<11: rd(k+3)
        e(f's_waitcnt vmcnt({min(10,k+6)-k if k>=2 else 5+k}) lgkmcnt({4*(min(10,k+3)-k)})')
        for ct in range(2): mfma(AC+16*ct,64+8*k+4*ct,16+4*k,'0' if k==0 else None)
    reduce_out(AC,90112,12,32,0)
    end(n)
def kernelC1():
    n='kc1_kernel'; begin(n,144)
    srd(32,'bsp'); srd(36,'wsp'); srd(40,'ws')
    e(f'''s_and_b32 s49, s7, 1
    s_lshr_b32 s48, s7, 1
    s_lshr_b32 s50, s7, 2
    s_and_b32 s51, s7, 3
    s_mul_i32 s52, s50, 20480
    s_mul_i32 s53, s51, 3072
    s_add_u32 s54, s52, s53
    s_lshl_b32 s55, s51, 11
    s_add_u32 s55, s55, s52
    s_add_u32 s55, s55, 12288
    s_mul_i32 s56, s50, 98304
    s_mul_i32 s57, s6, 12288
    s_add_u32 s56, s56, s57
    s_add_u32 s56, s56, s53
    s_add_u32 s56, s56, {Z2T}
    v_lshlrev_b32 v5, 4, v2
    s_lshl_b32 s57, s5, 18
    s_lshl_b32 s58, s51, 16
    s_add_u32 s57, s57, s58
    s_lshl_b32 s58, s50, 7
    s_add_u32 s57, s57, s58
    v_lshrrev_b32 v6, 3, v2
    v_lshlrev_b32 v6, 12, v6
    v_lshrrev_b32 v7, 4, v2
    v_and_b32 v8, 7, v2
    v_xor_b32 v7, v7, v8
    v_xor_b32 v8, 4, v7
    v_lshl_add_u32 v7, v7, 4, v6
    v_lshl_add_u32 v8, v8, 4, v6
    v_add_u32 v8, {8*4096-1024}, v8''')
    def dma(st):
        sl=(st&3)*40960
        e(f's_add_u32 m0, s54, {sl}\ns_add_u32 s58, s56, {st*2*98304}')
        for i in range(3): e(f'buffer_load_dwordx4 v5, s[40:43], s58 offen offset:{i*1024} lds')
        e(f'''s_add_u32 m0, s55, {sl}
        s_add_u32 s58, s57, {st*256}
        buffer_load_dwordx4 v7, s[36:39], s58 offen lds
        buffer_load_dwordx4 v8, s[36:39], s58 offen offset:1024 lds''')
    e(f'''s_lshl_b32 s59, s5, 7
    s_lshl_b32 s60, s50, 6
    s_add_u32 s59, s59, s60
    v_lshlrev_b32 v10, 1, v3
    buffer_load_ushort v9, v10, s[32:35], s59 offen
    s_lshl_b32 s59, s5, 1
    s_add_u32 s59, s59, s50
    s_mul_i32 s59, s59, 48
    s_mul_i32 s60, s6, 6
    s_add_u32 s59, s59, s60
    s_lshl_b32 s59, s59, 10
    s_mul_i32 s60, s51, 3''')
    for i in range(3):
        e(f'''s_add_u32 s61, s60, {i}
        s_lshr_b32 s62, s61, 1
        s_lshl_b32 s62, s62, 10
        s_and_b32 s61, s61, 1
        s_lshl_b32 s61, s61, 3
        s_add_u32 s62, s62, s61
        s_add_u32 s{64+i}, s62, s59
        s_add_u32 s62, s{64+i}, {Z1}
        s_add_u32 s{64+i}, s{64+i}, {UU}
        buffer_load_dwordx2 {vr(128+2*i,2)}, v5, s[40:43], s62 offen''')
    for st in range(2): dma(st)
    e(f'''s_lshl_b32 s59, s48, 1
    v_bfe_u32 v10, v3, 1, 3
    v_xor_b32 v10, v10, v4
    v_xor_b32 v10, s59, v10
    v_lshlrev_b32 v10, 4, v10
    v_lshl_add_u32 v10, v3, 7, v10
    s_lshl_b32 s59, s49, 12
    s_add_u32 s59, s59, 12288
    v_add_u32 v134, s59, v10
    v_add_u32 v11, 40960, v10
    v_add_u32 v12, 81920, v10
    v_add_u32 v13, 122880, v10
    v_add_u32 v135, 40960, v134
    v_add_u32 v136, 81920, v134
    v_add_u32 v137, 122880, v134''')
    AC=80
    def reads(st):
        o=(st&1)*32; sl=st&3
        for sb in range(2):
            e(f'ds_read_b128 {vr(16+o+16*sb+12,4)}, v{134+sl} offset:{sb*20480}')
            for t in range(3): e(f'ds_read_b128 {vr(16+o+16*sb+4*t,4)}, v{10+sl} offset:{sb*20480+t*4096}')
    def mm(st):
        o=(st&1)*32
        for sb in range(2):
            for t in range(3): mfma(AC+16*t,16+o+16*sb+4*t,16+o+16*sb+12,'0' if st==0 and sb==0 else None)
    for st in range(16):
        vm=5 if st==0 else min(10,5*(15-st))
        e(f's_waitcnt vmcnt({vm}) lgkmcnt(0)\ns_barrier')
        if st in (0,1,2,4,8,12,15): stamp({0:2,1:3,2:4,4:5,8:6,12:7,15:8}[st])
        reads(st)
        if st>=1: mm(st-1)
        if st>=1 and st+3<16: dma(st+3)
        if st==0: dma(2); dma(3)
    e('s_waitcnt lgkmcnt(0)')
    mm(15)
    pf('wout',32,0,6,1,138)
    e(f'''s_mul_i32 s59, s7, 12288
    v_add_u32 v10, s59, v5
    s_mul_i32 s59, s50, 12288
    s_add_u32 s59, s59, s53
    v_add_u32 v11, s59, v5
    v_add_u32 v12, 49152, v11
    v_lshlrev_b32 v9, 16, v9
    s_nop 7
    s_barrier''')
    stamp(9)
    for i in range(12): e(f'ds_write_b128 v10, {vr(AC+4*i,4)} offset:{i*1024}')
    e('s_waitcnt lgkmcnt(0)\ns_barrier')
    for i in range(3):
        for k in range(4): e(f'ds_read_b128 {vr(16+16*i+4*k,4)}, v{11+(k>>1)} offset:{(k&1)*24576+i*1024}')
    for i in range(3):
        b=16+16*i
        e(f's_waitcnt lgkmcnt({4*(2-i)})')
        for j in range(4): e(f'v_pk_add_f32 {vr(b+2*j,2)}, {vr(b+2*j,2)}, {vr(b+8+2*j,2)}')
        for j in range(2): e(f'v_pk_add_f32 {vr(b+2*j,2)}, {vr(b+2*j,2)}, {vr(b+4+2*j,2)}')
        for j in range(2): e(f'v_lshlrev_b32 v{b+4+2*j}, 16, v{128+2*i+j}\nv_and_b32 v{b+5+2*j}, 0xffff0000, v{128+2*i+j}')
        for j in range(4): e(f'v_add_f32 v{b+j}, v{b+j}, v9')
        for j in range(4): e(f'v_mul_f32 v{b+j}, v{b+j}, v{b+4+j}')
        e(f'v_cvt_pk_bf16_f32 v{b+8}, v{b}, v{b+1}\nv_cvt_pk_bf16_f32 v{b+9}, v{b+2}, v{b+3}')
        e(f'buffer_store_dwordx2 {vr(b+8,2)}, v5, s[40:43], s{64+i} offen')
    end(n)
def build(path):
    kernelA(); kernelB1(); kernelB2(); kernelC1(); kernelC2()
    ref=open('sequential_preLN__linear_kernel_hedgehog__mixer_gmlp__prompt.s.ref').read().split('\n')
    hd=[l for l in ref if l.startswith(';') and '@launch' not in l]
    for nm,b,l in (('ka',768,163840),('kb1',512,135168),('kb2',768,163840),('kc1',512,163840),('kc2',512,159744)):
        hd.append(f'; @launch kernel={nm}_kernel grid=(256,1,1) block=({b},1,1) lds={l}')
    hd+=['.amdgcn_target "amdgcn-amd-amdhsa--gfx950"','.text']
    tl=['.section .rodata,"a"']
    for nm,vg in KD:
        tl.append(f'''.p2align 6
.amdhsa_kernel {nm}
  .amdhsa_next_free_vgpr {vg}
  .amdhsa_next_free_sgpr 102
  .amdhsa_accum_offset {(vg+3)//4*4}
  .amdhsa_group_segment_fixed_size 0
  .amdhsa_kernarg_size 96
  .amdhsa_user_sgpr_count 2
  .amdhsa_user_sgpr_kernarg_segment_ptr 1
  .amdhsa_system_sgpr_workgroup_id_x 1
.end_amdhsa_kernel''')
    open(path,'w').write('\n'.join(hd+L+tl)+'\n')
if __name__=='__main__':
    import sys
    build(sys.argv[1] if len(sys.argv)>1 else 'sequential_preLN__linear_kernel_hedgehog__mixer_gmlp__prompt.s')
```

```python
L=[]
import os
STAMP=int(os.environ.get('STAMP','0'))
def e(s):
    for ln in s.strip('\n').split('\n'):
        if STAMP and ln.strip()=='s_endpgm': dump()
        L.append('  '+ln.strip())
def stamp(i):
    if STAMP: e(f's_memtime s[{70+2*i}:{71+2*i}]\ns_waitcnt lgkmcnt(0)')
def dump():
    stamp(14)
    e(f'''s_memrealtime s[100:101]
    s_mov_b64 exec, -1
    s_lshl_b32 s68, s2, 4
    s_add_u32 s68, s68, s7
    s_lshl_b32 s68, s68, 6
    s_add_u32 s68, s68, {(24<<20)+(len(KD)-1)*(1<<18)}
    s_waitcnt lgkmcnt(0)
    v_mov_b32 v0, 0''')
    for i in range(16): e(f'v_mov_b32 v1, s{70+2*i}\nbuffer_store_dword v1, v0, s[40:43], s68 offen offset:{4*i}')
def lab(s): L.append(s+':')
MB=1<<20
KV,PHIQ,HH,Z1,Z2T,UU,STATS=0,1*MB,5*MB,8*MB,12*MB,16*MB,20*MB
SZ={'x':2097152,'wqkv':1572864,'wphi':16384,'wo':524288,'win':1409024,'wsp':8388608,'bsp':4096,'wout':704512,'out':2097152,'dbg':256,'ws':268435456}
PT={'x':8,'wqkv':10,'wphi':12,'wo':14,'win':18,'wsp':20,'bsp':22,'wout':24,'out':26,'dbg':28,'ws':30}
KD=[]
MAP18='''s_lshl_b32 s5, s3, 2
    s_lshr_b32 s6, s4, 3
    s_add_u32 s5, s5, s6
    s_and_b32 s6, s4, 7'''
MAP24='''s_lshr_b32 s5, s3, 1
    s_lshl_b32 s5, s5, 3
    s_lshr_b32 s6, s4, 2
    s_add_u32 s5, s5, s6
    s_and_b32 s6, s3, 1
    s_lshl_b32 s6, s6, 2
    s_and_b32 s4, s4, 3
    s_add_u32 s6, s6, s4'''
M24=os.environ.get('M24','00000')
def begin(name,vg):
    m24=M24[len(KD)]=='1'
    KD.append((name,vg))
    L.append(f'.globl {name}\n.p2align 8\n.type {name},@function\n{name}:')
    e(f'''s_cmp_ge_u32 s2, 256
    s_cbranch_scc1 {name}_end
    s_load_dwordx16 s[8:23], s[0:1], 0
    s_load_dwordx8 s[24:31], s[0:1], 64
    s_and_b32 s3, s2, 7
    s_lshr_b32 s4, s2, 3
    '''+(MAP24 if m24 else MAP18)+f'''
    v_lshrrev_b32 v1, 6, v0
    v_and_b32 v2, 63, v0
    v_readfirstlane_b32 s7, v1
    v_and_b32 v3, 31, v0
    v_bfe_u32 v4, v0, 5, 1
    s_waitcnt lgkmcnt(0)''')
    if STAMP: e('s_memrealtime s[70:71]'); stamp(1)
def srd(r,n):
    e(f'''s_mov_b32 s{r}, s{PT[n]}
    s_mov_b32 s{r+1}, s{PT[n]+1}
    s_mov_b32 s{r+2}, {SZ[n]}
    s_mov_b32 s{r+3}, 0x00020000''')
PFN=[0]
def pf(nm,sr,w0,nw,rep,dst,base=None):
    PFN[0]+=1; lb=f'pf{PFN[0]}'
    srd(sr,nm)
    e(f'''s_sub_u32 s68, s7, {w0}
    s_cmp_ge_u32 s68, {nw}
    s_cbranch_scc1 {lb}
    s_lshl_b32 s68, s68, 12
    v_lshlrev_b32 v{dst}, 6, v2
    v_add_u32 v{dst}, s68, v{dst}''')
    e(base if base else f's_lshr_b32 s69, s2, 3\ns_mul_i32 s69, s69, {rep*nw*4096}')
    for j in range(rep):
        e(f'buffer_load_dword v{dst+1+j}, v{dst}, s[{sr}:{sr+3}], s69 offen')
        if j<rep-1: e(f's_add_u32 s69, s69, {nw*4096}')
    lab(lb)
def end(name):
    if STAMP: dump()
    lab(name+'_end'); L.append('  s_endpgm')
def vr(a,n): return f'v[{a}:{a+n-1}]'
def mfma(d,a,b,c=None):
    e(f'v_mfma_f32_32x32x16_bf16 {vr(d,16)}, {vr(a,4)}, {vr(b,4)}, '+(vr(d,16) if c is None else c))
def tr_base(dst,t1,t2,rowsh,himul,stride=128,swz=True,ctbit=None):
    e(f'''v_bfe_u32 v{t1}, v2, 2, 2
    v_mad_u32_u24 v{dst}, v4, {himul}, v{t1}
    v_mul_u32_u24 v{dst}, {stride}, v{dst}
    v_bfe_u32 v{t2}, v2, 4, 1
    v_lshlrev_b32 v{t2}, 5, v{t2}
    v_and_b32 v{t1}, 3, v2
    v_lshl_add_u32 v{t2}, v{t1}, 3, v{t2}''')
    if ctbit is not None: e(f'v_add_u32 v{t2}, {ctbit}, v{t2}')
    if swz:
        e(f'''v_bfe_u32 v{t1}, v2, 3, 1
        v_lshlrev_b32 v{t1}, 6, v{t1}
        v_xor_b32 v{t2}, v{t1}, v{t2}''')
    e(f'v_add_u32 v{dst}, v{dst}, v{t2}')
def red8(v,t):
    for m in ('quad_perm:[1,0,3,2]','quad_perm:[2,3,0,1]','row_half_mirror'):
        e(f's_nop 1\nv_add_f32_dpp v{v}, v{v}, v{v} {m} row_mask:0xf bank_mask:0xf')
ACC=112
def front(name,xs,xoff,stride,colbase,pre,substep,lnwait):
    e(f'''s_cmp_ge_u32 s7, 6
    s_cselect_b32 s49, 1, 0
    s_mul_i32 s48, s49, 6
    s_sub_u32 s48, s7, s48
    s_lshr_b32 s51, s7, 2''')
    colbase()
    e(f'''s_lshl_b32 s52, s5, 16
    s_add_u32 s52, s52, {xoff}
    v_lshrrev_b32 v5, 3, v0
    v_and_b32 v6, 7, v0
    v_lshlrev_b32 v7, 10, v5
    v_lshl_add_u32 v7, v6, 4, v7
    s_cmp_ge_u32 s7, 8
    s_cbranch_scc1 {name}_nox''')
    for i in range(8): e(f'buffer_load_dwordx4 {vr(16+4*i,4)}, v7, s[{xs}:{xs+3}], s52 offen offset:{i*128}')
    pre(3)
    lab(name+'_nox')
    e(f'''s_and_b32 s53, s7, 3
    s_lshl_b32 s54, s53, 11
    s_lshl_b32 s53, s53, 4
    v_lshrrev_b32 v8, 3, v2
    v_add_u32 v8, s53, v8
    v_mul_u32_u24 v8, {stride}, v8
    v_bfe_u32 v9, v2, 4, 1
    v_lshlrev_b32 v9, 2, v9
    v_and_b32 v10, 7, v2
    v_xor_b32 v9, v9, v10
    v_lshl_add_u32 v8, v9, 4, v8
    v_add_u32 v8, s50, v8
    v_add_u32 v9, {8*stride-1024}, v8
    s_add_u32 s54, s54, 65536''')
    cnt=[0]
    def dma(sts):
        cnt[0]+=1
        e(f's_cmp_lt_u32 s7, 8\ns_cbranch_scc1 {name}_d{cnt[0]}')
        for st in sts:
          for sb in range(3):
            e(f'''s_add_u32 m0, s54, {(st&3)*24576+sb*8192}
            s_mov_b32 s55, {st*64*stride+sb*substep}
            buffer_load_dwordx4 v8, s[36:39], s55 offen lds
            buffer_load_dwordx4 v9, s[36:39], s55 offen offset:1024 lds''')
        lab(f'{name}_d{cnt[0]}')
    pre(0)
    dma(range(2))
    pre(1)
    e(f'''s_cmp_ge_u32 s7, 8
    s_cbranch_scc1 {name}_noln
    s_waitcnt vmcnt({lnwait})''')
    stamp(2)
    for i in range(32):
        e(f'v_lshlrev_b32 v{48+2*i}, 16, v{16+i}\nv_and_b32 v{49+2*i}, 0xffff0000, v{16+i}')
    e(f'v_pk_add_f32 v[12:13], v[48:49], v[50:51]\nv_pk_mul_f32 v[14:15], v[48:49], v[48:49]\nv_pk_fma_f32 v[14:15], v[50:51], v[50:51], v[14:15]')
    for i in range(2,32):
        p=vr(48+2*i,2); e(f'v_pk_add_f32 v[12:13], v[12:13], {p}\nv_pk_fma_f32 v[14:15], {p}, {p}, v[14:15]')
    e('v_add_f32 v12, v12, v13\nv_add_f32 v14, v14, v15')
    red8(12,0); red8(14,0)
    e(f'''v_mul_f32 v12, 0x3b000000, v12
    v_mul_f32 v14, 0x3b000000, v14
    v_fma_f32 v14, -v12, v12, v14
    v_max_f32 v14, 0, v14
    v_add_f32 v14, 0x3727c5ac, v14
    v_rsq_f32 v14, v14
    v_bfe_u32 v10, v5, 1, 3
    v_xor_b32 v10, v10, v6
    v_mul_f32 v12, v12, v14
    v_mov_b32 v15, v14
    v_mul_f32 v12, -1.0, v12
    v_lshlrev_b32 v10, 4, v10
    v_mov_b32 v13, v12
    v_lshl_add_u32 v10, v5, 7, v10''')
    for i in range(8):
        for j in range(4):
            p=vr(48+8*i+2*j,2); e(f'v_pk_fma_f32 {p}, {p}, v[14:15], v[12:13]')
        for j in range(4):
            e(f'v_cvt_pk_bf16_f32 v{16+4*i+j}, v{48+8*i+2*j}, v{49+8*i+2*j}')
        e(f'ds_write_b128 v10, {vr(16+4*i,4)} offset:{i*8192}')
    lab(name+'_noln'); stamp(3)
    e('s_and_b32 s56, s48, 1\ns_lshl_b32 s56, s56, 6')
    tr_base(11,5,6,0,8,ctbit='s56')
    e(f'''s_lshr_b32 s56, s48, 1
    s_lshl_b32 s56, s56, 13
    s_add_u32 s56, s56, 65536
    v_add_u32 v11, s56, v11
    v_add_u32 v10, 49152, v11
    s_lshl_b32 s56, s49, 12
    v_lshlrev_b32 v5, 7, v3
    v_add_u32 v5, s56, v5
    v_bfe_u32 v6, v3, 1, 3
    v_xor_b32 v6, v6, v4''')
    for ks in range(4):
        e(f'v_xor_b32 v7, {2*ks}, v6\nv_lshl_add_u32 v{12+ks}, v7, 4, v5')
    vm=[6,12,12,12,12,12,6,0]
    def reads(st,ks):
        o=(st&1)*32; sl=st&3
        base,so=(11,sl*24576) if sl<2 else (10,(sl-2)*24576)
        e(f'''ds_read_b64_tr_b16 {vr(16+o+4*ks,2)}, v{base} offset:{so+ks*2048}
        ds_read_b64_tr_b16 {vr(18+o+4*ks,2)}, v{base} offset:{so+ks*2048+512}
        ds_read_b128 {vr(32+o+4*ks,4)}, v{12+ks} offset:{st*8192}''')
    for st in range(8):
        e(f's_waitcnt vmcnt({vm[st]}) lgkmcnt(0)\ns_barrier')
        if st in (0,1,4,7): stamp({0:4,1:5,4:6,7:7}[st])
        if st>=1 and st+3<8: dma([st+3])
        o=((st-1)&1)*32
        for ks in range(4):
            if st>=1: mfma(ACC,16+o+4*ks,32+o+4*ks,'0' if (st==1 and ks==0) else None)
            reads(st,ks)
        if st==0: dma([2,3])
        if st==5: pre(2)
    for ks in range(4):
        e(f's_waitcnt lgkmcnt({9-3*ks})')
        mfma(ACC,48+4*ks,64+4*ks)
    stamp(8)
```

```python
from g1 import *
LOG2E=0x3fb8aa3b
def swapred(op,v,t):
    e(f'v_mov_b32 v{t}, v{v}\ns_nop 1\nv_permlane32_swap_b32 v{v}, v{t}\ns_nop 1\n{op} v{v}, v{v}, v{t}')
def softmax8(b,m,t):
    e(f'v_max3_f32 v{m}, v{b}, v{b+1}, v{b+2}\nv_max3_f32 v{m}, v{m}, v{b+3}, v{b+4}\nv_max3_f32 v{m}, v{m}, v{b+5}, v{b+6}\nv_max_f32 v{m}, v{m}, v{b+7}')
    swapred('v_max_f32',m,t)
    e(f'v_mul_f32 v{m}, s62, v{m}\nv_mov_b32 v{t}, v{m}')
    for i in range(4): e(f'v_pk_fma_f32 {vr(b+2*i,2)}, {vr(b+2*i,2)}, s[60:61], {vr(m,2)}')
    for i in range(8): e(f'v_exp_f32 v{b+i}, v{b+i}')
    e(f'v_pk_add_f32 {vr(m,2)}, {vr(b,2)}, {vr(b+2,2)}\nv_pk_add_f32 {vr(m,2)}, {vr(m,2)}, {vr(b+4,2)}\nv_pk_add_f32 {vr(m,2)}, {vr(m,2)}, {vr(b+6,2)}\nv_add_f32 v{m}, v{m}, v{t}')
    swapred('v_add_f32',m,t)
    e(f'v_rcp_f32 v{m}, v{m}\ns_nop 0\nv_mov_b32 v{t}, v{m}')
    for i in range(4): e(f'v_pk_mul_f32 {vr(b+2*i,2)}, {vr(b+2*i,2)}, {vr(m,2)}')
def kernelA():
    n='ka_kernel'; begin(n,152)
    srd(32,'x'); srd(36,'wqkv'); srd(40,'ws'); srd(44,'wphi'); srd(64,'dbg')
    def colbase(): e('s_lshl_b32 s50, s6, 7')
    def pre(ph):
        if ph==0:
            e(f'''s_cmp_lg_u32 s5, 0
            s_cbranch_scc1 {n}_nz
            s_cmp_lt_u32 s7, 8
            s_cbranch_scc1 {n}_nz
            s_lshl_b32 s56, s6, 2
            s_add_u32 s56, s56, s7
            s_sub_u32 s56, s56, 8
            s_mul_i32 s56, s56, 2176
            v_lshlrev_b32 v10, 4, v2
            v_mov_b32 v12, 0
            v_mov_b32 v13, 0
            v_mov_b32 v14, 0
            v_mov_b32 v15, 0''')
            for o in (0,1024,1152): e(f'buffer_store_dwordx4 v[12:15], v10, s[40:43], s56 offen offset:{o} sc0 sc1')
            lab(n+'_nz')
        elif ph==3:
            e('v_lshlrev_b32 v140, 14, v0\ns_lshl_b32 s56, s2, 6\nbuffer_load_dword v141, v140, s[36:39], s56 offen')
            for j,nm in enumerate(('wo','win','wout')):
                srd(60,nm); e(f'buffer_load_dword v{142+j}, v140, s[60:63], s56 offen')
            srd(60,'wsp')
            e('v_lshlrev_b32 v140, 6, v0\ns_lshl_b32 s56, s2, 15\nbuffer_load_dword v145, v140, s[60:63], s56 offen')
        elif ph==2:
            e(f'''s_cmp_lg_u32 s7, 8
            s_cbranch_scc1 {n}_wp
            s_mov_b32 m0, 65536
            s_lshl_b32 s56, s6, 11
            v_lshlrev_b32 v5, 4, v2
            buffer_load_dwordx4 v5, s[44:47], s56 offen lds
            buffer_load_dwordx4 v5, s[44:47], s56 offen offset:1024 lds''')
            lab(n+'_wp')
        else:
            e(f'''s_cmp_lg_u32 s5, 0
            s_cbranch_scc1 {n}_nf
            s_cmp_lt_u32 s7, 8
            s_cbranch_scc1 {n}_nf
            s_waitcnt vmcnt(0)
            s_lshl_b32 s56, s6, 2
            v_mov_b32 v12, 1
            v_mov_b32 v13, 0
            s_mov_b64 exec, 1
            buffer_atomic_add v12, v13, s[64:67], s56 offen sc1
            s_mov_b64 exec, -1''')
            lab(n+'_nf')
    front(n,32,0,3072,colbase,pre,1024,5)
    pf('wo',56,0,4,1,140)
    e(f'''s_mov_b32 s60, {LOG2E}
    s_mov_b32 s61, {LOG2E}
    s_mov_b32 s62, {LOG2E|0x80000000}
    v_bfe_u32 v5, v2, 4, 1
    v_mul_u32_u24 v5, 0x8000, v5
    v_lshl_or_b32 v5, v5, 16, v5''')
    e(f'''v_bfe_u32 v6, v2, 2, 2
    v_lshl_add_u32 v6, v4, 2, v6
    v_lshlrev_b32 v6, 5, v6
    v_and_b32 v7, 3, v2
    v_lshl_add_u32 v6, v7, 3, v6
    s_and_b32 s56, s48, 1
    s_lshl_b32 s56, s56, 10
    s_add_u32 s56, s56, 65536
    v_add_u32 v6, s56, v6''')
    for i in range(4): e(f'ds_read_b64_tr_b16 {vr(128+2*i,2)}, v6 offset:{i*256}')
    e('s_waitcnt lgkmcnt(0)')
    for i in range(8): e(f'v_xor_b32 v{128+i}, v5, v{128+i}')
    for i in range(8): e(f'v_cvt_pk_bf16_f32 v{16+i}, v{ACC+2*i}, v{ACC+2*i+1}')
    e(f'''s_lshl_b32 s56, s49, 5
    v_add_u32 v6, s56, v3
    s_and_b32 s57, s48, 1
    s_cmp_ge_u32 s48, 4
    s_cbranch_scc1 {n}_v
    s_cmp_ge_u32 s48, 2
    s_cbranch_scc1 {n}_sm
    s_barrier''')
    lab(n+'_sm')
    mfma(32,128,16,'0'); mfma(48,132,20,'0')
    e('s_nop 7\ns_nop 3')
    softmax8(32,24,25); softmax8(40,26,27); softmax8(48,24,25); softmax8(56,26,27)
    for i in range(16): e(f'v_cvt_pk_bf16_f32 v{64+i}, v{32+2*i}, v{33+2*i}')
    stamp(9)
    e(f'''s_cmp_ge_u32 s48, 2
    s_cbranch_scc1 {n}_k
    s_lshl_b32 s56, s5, 1
    s_add_u32 s56, s56, s49
    s_lshl_b32 s56, s56, 16
    s_lshl_b32 s58, s6, 13
    s_add_u32 s56, s56, s58
    s_lshl_b32 s58, s57, 12
    s_add_u32 s56, s56, s58
    s_add_u32 s56, s56, {PHIQ}
    v_lshlrev_b32 v7, 4, v2''')
    for i in range(4): e(f'buffer_store_dwordx4 {vr(64+4*i,4)}, v7, s[40:43], s56 offen offset:{i*1024}')
    e('s_endpgm')
    lab(n+'_k')
    e(f'''v_mul_u32_u24 v7, 272, v6
    v_lshl_add_u32 v7, v4, 5, v7
    s_lshl_b32 s56, s57, 7
    v_add_u32 v7, s56, v7''')
    for i in range(4): e(f'ds_write_b128 v7, {vr(64+4*i,4)} offset:{(i>>1)*64+(i&1)*16}')
    e(f's_waitcnt lgkmcnt(0)\ns_barrier\ns_endpgm')
    lab(n+'_v')
    e(f'''v_mul_u32_u24 v7, 144, v6
    v_lshl_add_u32 v7, v4, 4, v7
    s_lshl_b32 s56, s57, 6
    v_add_u32 v7, s56, v7
    ds_write_b128 v7, v[16:19] offset:17408
    ds_write_b128 v7, v[20:23] offset:17440
    s_lshl_b32 s58, s49, 1
    s_add_u32 s58, s58, s57
    s_lshl_b32 s56, s6, 2
    v_mov_b32 v9, 0
    s_mov_b32 s59, 0''')
    stamp(9)
    lab(n+'_poll')
    e(f'''buffer_load_dword v8, v9, s[64:67], s56 offen sc0 sc1
    s_add_u32 s59, s59, 1
    s_waitcnt vmcnt(0)
    v_readfirstlane_b32 s63, v8
    s_cmp_gt_u32 s59, 0x4000
    s_cbranch_scc1 {n}_go
    s_cmp_lt_u32 s63, 4
    s_cbranch_scc1 {n}_poll''')
    lab(n+'_go'); stamp(10)
    tr_base(10,5,6,0,8,stride=272,swz=False)
    e(f'''v_bfe_u32 v5, v2, 2, 2
    v_lshl_add_u32 v11, v4, 3, v5
    v_mul_u32_u24 v11, 144, v11
    v_and_b32 v5, 3, v2
    v_lshl_add_u32 v11, v5, 3, v11
    s_lshl_b32 s57, s58, 6
    v_add_u32 v10, s57, v10
    s_lshl_b32 s57, s58, 5
    v_add_u32 v11, s57, v11
    v_cmp_lt_u32 vcc, 15, v3
    v_mov_b32 v12, 0x3f803f80
    s_waitcnt lgkmcnt(0)
    s_barrier''')
    for ks in range(4):
        for h in range(2):
            e(f'ds_read_b64_tr_b16 {vr(16+4*ks+2*h,2)}, v11 offset:{17408+(ks*16+4*h)*144}')
            e(f'ds_read_b64_tr_b16 {vr(32+4*ks+2*h,2)}, v10 offset:{(ks*16+4*h)*272}')
    e('s_waitcnt lgkmcnt(0)')
    for i in range(16): e(f'v_cndmask_b32 v{16+i}, v{16+i}, v12, vcc')
    e('s_nop 1')
    stamp(11)
    for ks in range(4): mfma(48,16+4*ks,32+4*ks,'0' if ks==0 else None)
    e(f'''s_add_u32 s56, s56, s58
    s_mul_i32 s56, s56, 2176
    v_lshlrev_b32 v7, 2, v3
    v_lshl_add_u32 v7, v4, 9, v7
    s_nop 7
    s_nop 3''')
    for r in range(8): e(f'buffer_atomic_add_f32 v{48+r}, v7, s[40:43], s56 offen offset:{((r&3)+8*(r>>2))*128} sc1')
    e('s_mov_b64 exec, 0xffffffff\nbuffer_atomic_add_f32 v56, v7, s[40:43], s56 offen offset:2048 sc1')
    end(n)
import struct,math
def fb(x): return hex(struct.unpack('<I',struct.pack('<f',x))[0])
def kernelB2():
    n='kb2_kernel'; begin(n,152)
    srd(36,'win'); srd(40,'ws')
    def colbase(): e('''s_lshr_b32 s56, s6, 2
        s_mul_i32 s50, s56, 1376
        s_and_b32 s56, s6, 3
        s_mul_i32 s56, s56, 384
        s_add_u32 s50, s50, s56''')
    front(n,40,HH,2752,colbase,lambda ph:None,128,0)
    pf('wsp',56,4,8,1,140,'s_lshl_b32 s69, s5, 18\ns_lshl_b32 s68, s6, 15\ns_add_u32 s69, s69, s68')
    k0=-2*0.7978845608028654*math.log2(math.e)
    e(f'''s_mov_b32 s60, {fb(k0*0.044715)}
    s_mov_b32 s61, s60
    s_mov_b32 s62, 1.0
    s_mov_b32 s63, 1.0
    v_mov_b32 v8, {fb(k0)}
    v_mov_b32 v9, {fb(k0)}
    s_and_b32 s57, s6, 3
    s_mul_i32 s57, s57, 6
    s_add_u32 s57, s57, s48
    s_lshl_b32 s58, s5, 1
    s_add_u32 s58, s58, s49
    s_nop 7
    s_nop 1''')
    A=ACC
    P=lambda b,i: vr(b+2*i,2)
    for i in range(8): e(f'v_pk_mul_f32 {P(16,i)}, {P(A,i)}, {P(A,i)}')
    for i in range(8): e(f'v_pk_fma_f32 {P(16,i)}, {P(16,i)}, s[60:61], v[8:9]')
    for i in range(8): e(f'v_pk_mul_f32 {P(16,i)}, {P(16,i)}, {P(A,i)}')
    for i in range(16): e(f'v_exp_f32 v{16+i}, v{16+i}')
    for i in range(8): e(f'v_pk_add_f32 {P(16,i)}, {P(16,i)}, s[62:63]')
    for i in range(16): e(f'v_rcp_f32 v{16+i}, v{16+i}')
    for i in range(8): e(f'v_pk_mul_f32 {P(A,i)}, {P(16,i)}, {P(A,i)}')
    e(f's_cmp_ge_u32 s6, 4\ns_cbranch_scc1 {n}_z2')
    for i in range(8): e(f'v_cvt_pk_bf16_f32 v{16+i}, v{A+2*i}, v{A+2*i+1}')
    e(f'''s_mul_i32 s56, s58, 24
    s_add_u32 s56, s56, s57
    s_lshl_b32 s56, s56, 11
    s_add_u32 s56, s56, {Z1}
    v_lshlrev_b32 v7, 4, v2
    buffer_store_dwordx4 v[16:19], v7, s[40:43], s56 offen
    buffer_store_dwordx4 v[20:23], v7, s[40:43], s56 offen offset:1024
    s_endpgm''')
    lab(n+'_z2')
    e(f's_cmp_lt_u32 s57, 21\ns_cbranch_scc1 {n}_nm')
    for i in range(8,16): e(f'v_mov_b32 v{A+i}, 0')
    e(f's_cmp_lt_u32 s57, 22\ns_cbranch_scc1 {n}_nm')
    for i in range(8): e(f'v_mov_b32 v{A+i}, 0')
    lab(n+'_nm')
    e(f'v_pk_add_f32 v[16:17], {vr(A,2)}, {vr(A+2,2)}\nv_pk_mul_f32 v[18:19], {vr(A,2)}, {vr(A,2)}\nv_pk_fma_f32 v[18:19], {vr(A+2,2)}, {vr(A+2,2)}, v[18:19]')
    for i in range(2,8):
        p=vr(A+2*i,2); e(f'v_pk_add_f32 v[16:17], v[16:17], {p}\nv_pk_fma_f32 v[18:19], {p}, {p}, v[18:19]')
    e('v_add_f32 v16, v16, v17\nv_add_f32 v17, v18, v19')
    swapred('v_add_f32',16,18); swapred('v_add_f32',17,19)
    e(f'''s_lshl_b32 s56, s49, 5
    v_add_u32 v6, s56, v3
    v_lshlrev_b32 v6, 3, v6
    s_lshl_b32 s56, s48, 9
    v_add_u32 v7, s56, v6
    ds_write_b64 v7, v[16:17]
    s_waitcnt lgkmcnt(0)
    s_barrier
    s_cmp_lg_u32 s7, 0
    s_cbranch_scc1 {n}_w
    v_lshlrev_b32 v7, 3, v2''')
    for c in range(6): e(f'ds_read_b64 {vr(16+2*c,2)}, v7 offset:{c*512}')
    e(f'''s_lshl_b32 s56, s5, 11
    s_add_u32 s56, s56, {STATS}
    s_and_b32 s59, s6, 3
    s_lshl_b32 s59, s59, 9
    s_add_u32 s59, s59, s56
    s_waitcnt lgkmcnt(0)''')
    for c in range(1,6): e(f'v_pk_add_f32 v[16:17], v[16:17], {vr(16+2*c,2)}')
    e(f'buffer_store_dwordx2 v[16:17], v7, s[40:43], s59 offen sc0 sc1\ns_mov_b32 s59, 0')
    stamp(9)
    lab(n+'_poll')
    for c in range(4): e(f'buffer_load_dwordx2 {vr(20+2*c,2)}, v7, s[40:43], s56 offen offset:{c*512} sc0 sc1')
    e(f'''s_add_u32 s59, s59, 1
    s_waitcnt vmcnt(0)
    v_max_u32 v18, v21, v23
    v_max3_u32 v18, v18, v25, v27
    v_cmp_eq_u32 vcc, -1, v18
    s_cmp_gt_u32 s59, 0x4000
    s_cbranch_scc1 {n}_go
    s_nop 1
    s_cbranch_vccnz {n}_poll''')
    lab(n+'_go'); stamp(10)
    e(f'''v_pk_add_f32 v[20:21], v[20:21], v[22:23]
    v_pk_add_f32 v[24:25], v[24:25], v[26:27]
    v_pk_add_f32 v[20:21], v[20:21], v[24:25]
    v_mul_f32 v20, {fb(1/688)}, v20
    v_mul_f32 v21, {fb(1/688)}, v21
    v_fma_f32 v21, -v20, v20, v21
    v_max_f32 v21, 0, v21
    v_add_f32 v21, 0x3727c5ac, v21
    v_rsq_f32 v21, v21
    s_nop 0
    v_mul_f32 v20, v20, v21
    v_mul_f32 v20, -1.0, v20
    ds_write_b64 v7, v[20:21] offset:4096
    s_waitcnt lgkmcnt(0)''')
    lab(n+'_w')
    e(f'''s_barrier
    ds_read_b64 v[16:17], v6 offset:4096
    s_mul_i32 s56, s7, 2560
    s_add_u32 s56, s56, 8192
    v_mul_u32_u24 v7, 80, v3
    v_lshl_add_u32 v7, v4, 3, v7
    v_add_u32 v7, s56, v7''')
    tr_base(10,8,9,0,8,stride=80,swz=False,ctbit='s56')
    e(f'''s_mul_i32 s56, s5, 98304
    s_lshl_b32 s59, s57, 12
    s_add_u32 s56, s56, s59
    s_add_u32 s56, s56, {Z2T}
    s_lshl_b32 s59, s49, 2
    v_bfe_u32 v8, v3, 1, 3
    v_xor_b32 v8, v8, v4
    v_xor_b32 v8, s59, v8
    v_xor_b32 v9, 2, v8
    v_lshlrev_b32 v11, 7, v3
    v_lshl_add_u32 v8, v8, 4, v11
    v_lshl_add_u32 v9, v9, 4, v11
    s_waitcnt lgkmcnt(0)''')
    for i in range(16): e(f'v_fma_f32 v{A+i}, v{A+i}, v17, v16')
    for i in range(8): e(f'v_cvt_pk_bf16_f32 v{20+i}, v{A+2*i}, v{A+2*i+1}')
    for q in range(4): e(f'ds_write_b64 v7, {vr(20+2*q,2)} offset:{q*16}')
    e('s_waitcnt lgkmcnt(0)')
    for m in range(2):
        for h in range(2): e(f'ds_read_b64_tr_b16 {vr(32+4*m+2*h,2)}, v10 offset:{(m*16+4*h)*80}')
    e(f'''s_waitcnt lgkmcnt(0)
    buffer_store_dwordx4 v[32:35], v8, s[40:43], s56 offen
    buffer_store_dwordx4 v[36:39], v9, s[40:43], s56 offen''')
    end(n)
```

```python
from g1 import *
LOG2E=0x3fb8aa3b
def swapred(op,v,t):
    e(f'v_mov_b32 v{t}, v{v}\ns_nop 1\nv_permlane32_swap_b32 v{v}, v{t}\ns_nop 1\n{op} v{v}, v{v}, v{t}')
def softmax8(b,m,t):
    e(f'v_max3_f32 v{m}, v{b}, v{b+1}, v{b+2}\nv_max3_f32 v{m}, v{m}, v{b+3}, v{b+4}\nv_max3_f32 v{m}, v{m}, v{b+5}, v{b+6}\nv_max_f32 v{m}, v{m}, v{b+7}')
    swapred('v_max_f32',m,t)
    e(f'v_mul_f32 v{m}, s62, v{m}\nv_mov_b32 v{t}, v{m}')
    for i in range(4): e(f'v_pk_fma_f32 {vr(b+2*i,2)}, {vr(b+2*i,2)}, s[60:61], {vr(m,2)}')
    for i in range(8): e(f'v_exp_f32 v{b+i}, v{b+i}')
    e(f'v_pk_add_f32 {vr(m,2)}, {vr(b,2)}, {vr(b+2,2)}\nv_pk_add_f32 {vr(m,2)}, {vr(m,2)}, {vr(b+4,2)}\nv_pk_add_f32 {vr(m,2)}, {vr(m,2)}, {vr(b+6,2)}\nv_add_f32 v{m}, v{m}, v{t}')
    swapred('v_add_f32',m,t)
    e(f'v_rcp_f32 v{m}, v{m}\ns_nop 0\nv_mov_b32 v{t}, v{m}')
    for i in range(4): e(f'v_pk_mul_f32 {vr(b+2*i,2)}, {vr(b+2*i,2)}, {vr(m,2)}')
def kernelA():
    n='ka_kernel'; begin(n,152)
    srd(32,'x'); srd(36,'wqkv'); srd(40,'ws'); srd(44,'wphi'); srd(64,'dbg')
    def colbase(): e('s_lshl_b32 s50, s6, 7')
    def pre(ph):
        if ph==0:
            e(f'''s_cmp_lg_u32 s5, 0
            s_cbranch_scc1 {n}_nz
            s_cmp_lt_u32 s7, 8
            s_cbranch_scc1 {n}_nz
            s_lshl_b32 s56, s6, 2
            s_add_u32 s56, s56, s7
            s_sub_u32 s56, s56, 8
            s_mul_i32 s56, s56, 2176
            v_lshlrev_b32 v10, 4, v2
            v_mov_b32 v12, 0
            v_mov_b32 v13, 0
            v_mov_b32 v14, 0
            v_mov_b32 v15, 0''')
            for o in (0,1024,1152): e(f'buffer_store_dwordx4 v[12:15], v10, s[40:43], s56 offen offset:{o} sc0 sc1')
            lab(n+'_nz')
        elif ph==3: pass
        elif ph==2:
            e(f'''s_cmp_lg_u32 s7, 8
            s_cbranch_scc1 {n}_wp
            s_mov_b32 m0, 65536
            s_lshl_b32 s56, s6, 11
            v_lshlrev_b32 v5, 4, v2
            buffer_load_dwordx4 v5, s[44:47], s56 offen lds
            buffer_load_dwordx4 v5, s[44:47], s56 offen offset:1024 lds''')
            lab(n+'_wp')
        else:
            pf('wqkv',60,8,2,1,140,'s_mul_i32 s69, s2, 6144')
            e(f'''s_cmp_lg_u32 s5, 0
            s_cbranch_scc1 {n}_nf
            s_cmp_lt_u32 s7, 8
            s_cbranch_scc1 {n}_nf
            s_waitcnt vmcnt(0)
            s_lshl_b32 s56, s6, 2
            v_mov_b32 v12, 1
            v_mov_b32 v13, 0
            s_mov_b64 exec, 1
            buffer_atomic_add v12, v13, s[64:67], s56 offen sc1
            s_mov_b64 exec, -1''')
            lab(n+'_nf')
    front(n,32,0,3072,colbase,pre,1024,0)
    e(f'''s_mov_b32 s60, {LOG2E}
    s_mov_b32 s61, {LOG2E}
    s_mov_b32 s62, {LOG2E|0x80000000}
    v_bfe_u32 v5, v2, 4, 1
    v_mul_u32_u24 v5, 0x8000, v5
    v_lshl_or_b32 v5, v5, 16, v5''')
    e(f'''v_bfe_u32 v6, v2, 2, 2
    v_lshl_add_u32 v6, v4, 2, v6
    v_lshlrev_b32 v6, 5, v6
    v_and_b32 v7, 3, v2
    v_lshl_add_u32 v6, v7, 3, v6
    s_and_b32 s56, s48, 1
    s_lshl_b32 s56, s56, 10
    s_add_u32 s56, s56, 65536
    v_add_u32 v6, s56, v6''')
    for i in range(4): e(f'ds_read_b64_tr_b16 {vr(128+2*i,2)}, v6 offset:{i*256}')
    e('s_waitcnt lgkmcnt(0)')
    for i in range(8): e(f'v_xor_b32 v{128+i}, v5, v{128+i}')
    for i in range(8): e(f'v_cvt_pk_bf16_f32 v{16+i}, v{ACC+2*i}, v{ACC+2*i+1}')
    e(f'''s_lshl_b32 s56, s49, 5
    v_add_u32 v6, s56, v3
    s_and_b32 s57, s48, 1
    s_cmp_ge_u32 s48, 4
    s_cbranch_scc1 {n}_v
    s_cmp_ge_u32 s48, 2
    s_cbranch_scc1 {n}_sm
    s_barrier''')
    pf('wo',44,0,2,2,140)
    pf('win',44,6,2,1,140,'s_mul_i32 s69, s2, 5504')
    pf('wout',44,7,1,1,142,'s_mul_i32 s69, s2, 2752')
    lab(n+'_sm')
    mfma(32,128,16,'0'); mfma(48,132,20,'0')
    e('s_nop 7\ns_nop 3')
    softmax8(32,24,25); softmax8(40,26,27); softmax8(48,24,25); softmax8(56,26,27)
    for i in range(16): e(f'v_cvt_pk_bf16_f32 v{64+i}, v{32+2*i}, v{33+2*i}')
    stamp(9)
    e(f'''s_cmp_ge_u32 s48, 2
    s_cbranch_scc1 {n}_k
    s_lshl_b32 s56, s5, 1
    s_add_u32 s56, s56, s49
    s_lshl_b32 s56, s56, 16
    s_lshl_b32 s58, s6, 13
    s_add_u32 s56, s56, s58
    s_lshl_b32 s58, s57, 12
    s_add_u32 s56, s56, s58
    s_add_u32 s56, s56, {PHIQ}
    v_lshlrev_b32 v7, 4, v2''')
    for i in range(4): e(f'buffer_store_dwordx4 {vr(64+4*i,4)}, v7, s[40:43], s56 offen offset:{i*1024}')
    e('s_endpgm')
    lab(n+'_k')
    e(f'''v_mul_u32_u24 v7, 272, v6
    v_lshl_add_u32 v7, v4, 5, v7
    s_lshl_b32 s56, s57, 7
    v_add_u32 v7, s56, v7''')
    for i in range(4): e(f'ds_write_b128 v7, {vr(64+4*i,4)} offset:{(i>>1)*64+(i&1)*16}')
    e(f's_waitcnt lgkmcnt(0)\ns_barrier\ns_endpgm')
    lab(n+'_v')
    e(f'''v_mul_u32_u24 v7, 144, v6
    v_lshl_add_u32 v7, v4, 4, v7
    s_lshl_b32 s56, s57, 6
    v_add_u32 v7, s56, v7
    ds_write_b128 v7, v[16:19] offset:17408
    ds_write_b128 v7, v[20:23] offset:17440
    s_lshl_b32 s58, s49, 1
    s_add_u32 s58, s58, s57
    s_lshl_b32 s56, s6, 2
    v_mov_b32 v9, 0
    s_mov_b32 s59, 0''')
    stamp(9)
    lab(n+'_poll')
    e(f'''buffer_load_dword v8, v9, s[64:67], s56 offen sc0 sc1
    s_add_u32 s59, s59, 1
    s_waitcnt vmcnt(0)
    v_readfirstlane_b32 s63, v8
    s_cmp_gt_u32 s59, 0x4000
    s_cbranch_scc1 {n}_go
    s_cmp_lt_u32 s63, 4
    s_cbranch_scc1 {n}_poll''')
    lab(n+'_go'); stamp(10)
    tr_base(10,5,6,0,8,stride=272,swz=False)
    e(f'''v_bfe_u32 v5, v2, 2, 2
    v_lshl_add_u32 v11, v4, 3, v5
    v_mul_u32_u24 v11, 144, v11
    v_and_b32 v5, 3, v2
    v_lshl_add_u32 v11, v5, 3, v11
    s_lshl_b32 s57, s58, 6
    v_add_u32 v10, s57, v10
    s_lshl_b32 s57, s58, 5
    v_add_u32 v11, s57, v11
    v_cmp_lt_u32 vcc, 15, v3
    v_mov_b32 v12, 0x3f803f80
    s_waitcnt lgkmcnt(0)
    s_barrier''')
    for ks in range(4):
        for h in range(2):
            e(f'ds_read_b64_tr_b16 {vr(16+4*ks+2*h,2)}, v11 offset:{17408+(ks*16+4*h)*144}')
            e(f'ds_read_b64_tr_b16 {vr(32+4*ks+2*h,2)}, v10 offset:{(ks*16+4*h)*272}')
    e('s_waitcnt lgkmcnt(0)')
    for i in range(16): e(f'v_cndmask_b32 v{16+i}, v{16+i}, v12, vcc')
    e('s_nop 1')
    stamp(11)
    for ks in range(4): mfma(48,16+4*ks,32+4*ks,'0' if ks==0 else None)
    e(f'''s_add_u32 s56, s56, s58
    s_mul_i32 s56, s56, 2176
    v_lshlrev_b32 v7, 2, v3
    v_lshl_add_u32 v7, v4, 9, v7
    s_nop 7
    s_nop 3''')
    for r in range(8): e(f'buffer_atomic_add_f32 v{48+r}, v7, s[40:43], s56 offen offset:{((r&3)+8*(r>>2))*128} sc1')
    e('s_mov_b64 exec, 0xffffffff\nbuffer_atomic_add_f32 v56, v7, s[40:43], s56 offen offset:2048 sc1')
    end(n)
import struct,math
def fb(x): return hex(struct.unpack('<I',struct.pack('<f',x))[0])
def kernelB2():
    n='kb2_kernel'; begin(n,152)
    srd(36,'win'); srd(40,'ws')
    def colbase(): e('''s_lshr_b32 s56, s6, 2
        s_mul_i32 s50, s56, 1376
        s_and_b32 s56, s6, 3
        s_mul_i32 s56, s56, 384
        s_add_u32 s50, s50, s56''')
    front(n,40,HH,2752,colbase,lambda ph:None,128,0)
    k0=-2*0.7978845608028654*math.log2(math.e)
    e(f'''s_mov_b32 s60, {fb(k0*0.044715)}
    s_mov_b32 s61, s60
    s_mov_b32 s62, 1.0
    s_mov_b32 s63, 1.0
    v_mov_b32 v8, {fb(k0)}
    v_mov_b32 v9, {fb(k0)}
    s_and_b32 s57, s6, 3
    s_mul_i32 s57, s57, 6
    s_add_u32 s57, s57, s48
    s_lshl_b32 s58, s5, 1
    s_add_u32 s58, s58, s49
    s_nop 7
    s_nop 1''')
    A=ACC
    P=lambda b,i: vr(b+2*i,2)
    for i in range(8): e(f'v_pk_mul_f32 {P(16,i)}, {P(A,i)}, {P(A,i)}')
    for i in range(8): e(f'v_pk_fma_f32 {P(16,i)}, {P(16,i)}, s[60:61], v[8:9]')
    for i in range(8): e(f'v_pk_mul_f32 {P(16,i)}, {P(16,i)}, {P(A,i)}')
    for i in range(16): e(f'v_exp_f32 v{16+i}, v{16+i}')
    for i in range(8): e(f'v_pk_add_f32 {P(16,i)}, {P(16,i)}, s[62:63]')
    for i in range(16): e(f'v_rcp_f32 v{16+i}, v{16+i}')
    for i in range(8): e(f'v_pk_mul_f32 {P(A,i)}, {P(16,i)}, {P(A,i)}')
    e(f's_cmp_ge_u32 s6, 4\ns_cbranch_scc1 {n}_z2')
    pf('wsp',44,0,8,2,140,'s_lshl_b32 s69, s5, 18\ns_lshl_b32 s68, s6, 16\ns_add_u32 s69, s69, s68')
    for i in range(8): e(f'v_cvt_pk_bf16_f32 v{16+i}, v{A+2*i}, v{A+2*i+1}')
    e(f'''s_mul_i32 s56, s58, 24
    s_add_u32 s56, s56, s57
    s_lshl_b32 s56, s56, 11
    s_add_u32 s56, s56, {Z1}
    v_lshlrev_b32 v7, 4, v2
    buffer_store_dwordx4 v[16:19], v7, s[40:43], s56 offen
    buffer_store_dwordx4 v[20:23], v7, s[40:43], s56 offen offset:1024
    s_endpgm''')
    lab(n+'_z2')
    e(f's_cmp_lt_u32 s57, 21\ns_cbranch_scc1 {n}_nm')
    for i in range(8,16): e(f'v_mov_b32 v{A+i}, 0')
    e(f's_cmp_lt_u32 s57, 22\ns_cbranch_scc1 {n}_nm')
    for i in range(8): e(f'v_mov_b32 v{A+i}, 0')
    lab(n+'_nm')
    e(f'v_pk_add_f32 v[16:17], {vr(A,2)}, {vr(A+2,2)}\nv_pk_mul_f32 v[18:19], {vr(A,2)}, {vr(A,2)}\nv_pk_fma_f32 v[18:19], {vr(A+2,2)}, {vr(A+2,2)}, v[18:19]')
    for i in range(2,8):
        p=vr(A+2*i,2); e(f'v_pk_add_f32 v[16:17], v[16:17], {p}\nv_pk_fma_f32 v[18:19], {p}, {p}, v[18:19]')
    e('v_add_f32 v16, v16, v17\nv_add_f32 v17, v18, v19')
    swapred('v_add_f32',16,18); swapred('v_add_f32',17,19)
    e(f'''s_lshl_b32 s56, s49, 5
    v_add_u32 v6, s56, v3
    v_lshlrev_b32 v6, 3, v6
    s_lshl_b32 s56, s48, 9
    v_add_u32 v7, s56, v6
    ds_write_b64 v7, v[16:17]
    s_waitcnt lgkmcnt(0)
    s_barrier
    s_cmp_lg_u32 s7, 0
    s_cbranch_scc1 {n}_w
    v_lshlrev_b32 v7, 3, v2''')
    for c in range(6): e(f'ds_read_b64 {vr(16+2*c,2)}, v7 offset:{c*512}')
    e(f'''s_lshl_b32 s56, s5, 11
    s_add_u32 s56, s56, {STATS}
    s_and_b32 s59, s6, 3
    s_lshl_b32 s59, s59, 9
    s_add_u32 s59, s59, s56
    s_waitcnt lgkmcnt(0)''')
    for c in range(1,6): e(f'v_pk_add_f32 v[16:17], v[16:17], {vr(16+2*c,2)}')
    e(f'buffer_store_dwordx2 v[16:17], v7, s[40:43], s59 offen sc0 sc1\ns_mov_b32 s59, 0')
    stamp(9)
    lab(n+'_poll')
    for c in range(4): e(f'buffer_load_dwordx2 {vr(20+2*c,2)}, v7, s[40:43], s56 offen offset:{c*512} sc0 sc1')
    e(f'''s_add_u32 s59, s59, 1
    s_waitcnt vmcnt(0)
    v_max_u32 v18, v21, v23
    v_max3_u32 v18, v18, v25, v27
    v_cmp_eq_u32 vcc, -1, v18
    s_cmp_gt_u32 s59, 0x4000
    s_cbranch_scc1 {n}_go
    s_nop 1
    s_cbranch_vccnz {n}_poll''')
    lab(n+'_go'); stamp(10)
    e(f'''v_pk_add_f32 v[20:21], v[20:21], v[22:23]
    v_pk_add_f32 v[24:25], v[24:25], v[26:27]
    v_pk_add_f32 v[20:21], v[20:21], v[24:25]
    v_mul_f32 v20, {fb(1/688)}, v20
    v_mul_f32 v21, {fb(1/688)}, v21
    v_fma_f32 v21, -v20, v20, v21
    v_max_f32 v21, 0, v21
    v_add_f32 v21, 0x3727c5ac, v21
    v_rsq_f32 v21, v21
    s_nop 0
    v_mul_f32 v20, v20, v21
    v_mul_f32 v20, -1.0, v20
    ds_write_b64 v7, v[20:21] offset:4096
    s_waitcnt lgkmcnt(0)''')
    lab(n+'_w')
    e(f'''s_barrier
    ds_read_b64 v[16:17], v6 offset:4096
    s_mul_i32 s56, s7, 2560
    s_add_u32 s56, s56, 8192
    v_mul_u32_u24 v7, 80, v3
    v_lshl_add_u32 v7, v4, 3, v7
    v_add_u32 v7, s56, v7''')
    tr_base(10,8,9,0,8,stride=80,swz=False,ctbit='s56')
    e(f'''s_mul_i32 s56, s5, 98304
    s_lshl_b32 s59, s57, 12
    s_add_u32 s56, s56, s59
    s_add_u32 s56, s56, {Z2T}
    s_lshl_b32 s59, s49, 2
    v_bfe_u32 v8, v3, 1, 3
    v_xor_b32 v8, v8, v4
    v_xor_b32 v8, s59, v8
    v_xor_b32 v9, 2, v8
    v_lshlrev_b32 v11, 7, v3
    v_lshl_add_u32 v8, v8, 4, v11
    v_lshl_add_u32 v9, v9, 4, v11
    s_waitcnt lgkmcnt(0)''')
    for i in range(16): e(f'v_fma_f32 v{A+i}, v{A+i}, v17, v16')
    for i in range(8): e(f'v_cvt_pk_bf16_f32 v{20+i}, v{A+2*i}, v{A+2*i+1}')
    for q in range(4): e(f'ds_write_b64 v7, {vr(20+2*q,2)} offset:{q*16}')
    e('s_waitcnt lgkmcnt(0)')
    for m in range(2):
        for h in range(2): e(f'ds_read_b64_tr_b16 {vr(32+4*m+2*h,2)}, v10 offset:{(m*16+4*h)*80}')
    e(f'''s_waitcnt lgkmcnt(0)
    buffer_store_dwordx4 v[32:35], v8, s[40:43], s56 offen
    buffer_store_dwordx4 v[36:39], v9, s[40:43], s56 offen''')
    end(n)
```

```python
from g1 import *
LOG2E=0x3fb8aa3b
def swapred(op,v,t):
    e(f'v_mov_b32 v{t}, v{v}\ns_nop 1\nv_permlane32_swap_b32 v{v}, v{t}\ns_nop 1\n{op} v{v}, v{v}, v{t}')
def softmax8(b,m,t):
    e(f'v_max3_f32 v{m}, v{b}, v{b+1}, v{b+2}\nv_max3_f32 v{m}, v{m}, v{b+3}, v{b+4}\nv_max3_f32 v{m}, v{m}, v{b+5}, v{b+6}\nv_max_f32 v{m}, v{m}, v{b+7}')
    swapred('v_max_f32',m,t)
    e(f'v_mul_f32 v{m}, s62, v{m}\nv_mov_b32 v{t}, v{m}')
    for i in range(4): e(f'v_pk_fma_f32 {vr(b+2*i,2)}, {vr(b+2*i,2)}, s[60:61], {vr(m,2)}')
    for i in range(8): e(f'v_exp_f32 v{b+i}, v{b+i}')
    e(f'v_pk_add_f32 {vr(m,2)}, {vr(b,2)}, {vr(b+2,2)}\nv_pk_add_f32 {vr(m,2)}, {vr(m,2)}, {vr(b+4,2)}\nv_pk_add_f32 {vr(m,2)}, {vr(m,2)}, {vr(b+6,2)}\nv_add_f32 v{m}, v{m}, v{t}')
    swapred('v_add_f32',m,t)
    e(f'v_rcp_f32 v{m}, v{m}\ns_nop 0\nv_mov_b32 v{t}, v{m}')
    for i in range(4): e(f'v_pk_mul_f32 {vr(b+2*i,2)}, {vr(b+2*i,2)}, {vr(m,2)}')
def kernelA():
    n='ka_kernel'; begin(n,152)
    e(f'''s_lshr_b32 s68, s2, 3
    s_cmp_ge_u32 s68, 6
    s_cbranch_scc1 {n}_ncp
    s_cmp_lg_u32 s7, 8
    s_cbranch_scc1 {n}_ncp
    s_getpc_b64 s[60:61]''')
    lab(n+'_pc')
    e(f'''s_sub_u32 s60, s60, {n}_pc-{n}
    s_subb_u32 s61, s61, 0
    s_lshl_b32 s68, s68, 12
    v_lshlrev_b32 v140, 6, v2
    v_add_u32 v140, s68, v140
    v_min_u32 v140, kc2_kernel_end-{n}, v140
    global_load_dword v141, v140, s[60:61]''')
    lab(n+'_ncp')
    srd(32,'x'); srd(36,'wqkv'); srd(40,'ws'); srd(44,'wphi'); srd(64,'dbg')
    def colbase(): e('s_lshl_b32 s50, s6, 7')
    def pre(ph):
        if ph==0:
            e(f'''s_cmp_lg_u32 s5, 0
            s_cbranch_scc1 {n}_nz
            s_cmp_lt_u32 s7, 8
            s_cbranch_scc1 {n}_nz
            s_lshl_b32 s56, s6, 2
            s_add_u32 s56, s56, s7
            s_sub_u32 s56, s56, 8
            s_mul_i32 s56, s56, 2176
            v_lshlrev_b32 v10, 4, v2
            v_mov_b32 v12, 0
            v_mov_b32 v13, 0
            v_mov_b32 v14, 0
            v_mov_b32 v15, 0''')
            for o in (0,1024,1152): e(f'buffer_store_dwordx4 v[12:15], v10, s[40:43], s56 offen offset:{o} sc0 sc1')
            lab(n+'_nz')
        elif ph==3: pass
        elif ph==2:
            e(f'''s_cmp_lg_u32 s7, 8
            s_cbranch_scc1 {n}_wp
            s_mov_b32 m0, 65536
            s_lshl_b32 s56, s6, 11
            v_lshlrev_b32 v5, 4, v2
            buffer_load_dwordx4 v5, s[44:47], s56 offen lds
            buffer_load_dwordx4 v5, s[44:47], s56 offen offset:1024 lds''')
            lab(n+'_wp')
        else:
            pf('wqkv',60,8,2,1,140,'s_mul_i32 s69, s2, 6144')
            e(f'''s_cmp_lg_u32 s5, 0
            s_cbranch_scc1 {n}_nf
            s_cmp_lt_u32 s7, 8
            s_cbranch_scc1 {n}_nf
            s_waitcnt vmcnt(0)
            s_lshl_b32 s56, s6, 2
            v_mov_b32 v12, 1
            v_mov_b32 v13, 0
            s_mov_b64 exec, 1
            buffer_atomic_add v12, v13, s[64:67], s56 offen sc1
            s_mov_b64 exec, -1''')
            lab(n+'_nf')
    front(n,32,0,3072,colbase,pre,1024,0)
    e(f'''s_mov_b32 s60, {LOG2E}
    s_mov_b32 s61, {LOG2E}
    s_mov_b32 s62, {LOG2E|0x80000000}
    v_bfe_u32 v5, v2, 4, 1
    v_mul_u32_u24 v5, 0x8000, v5
    v_lshl_or_b32 v5, v5, 16, v5''')
    e(f'''v_bfe_u32 v6, v2, 2, 2
    v_lshl_add_u32 v6, v4, 2, v6
    v_lshlrev_b32 v6, 5, v6
    v_and_b32 v7, 3, v2
    v_lshl_add_u32 v6, v7, 3, v6
    s_and_b32 s56, s48, 1
    s_lshl_b32 s56, s56, 10
    s_add_u32 s56, s56, 65536
    v_add_u32 v6, s56, v6''')
    for i in range(4): e(f'ds_read_b64_tr_b16 {vr(128+2*i,2)}, v6 offset:{i*256}')
    e('s_waitcnt lgkmcnt(0)')
    for i in range(8): e(f'v_xor_b32 v{128+i}, v5, v{128+i}')
    for i in range(8): e(f'v_cvt_pk_bf16_f32 v{16+i}, v{ACC+2*i}, v{ACC+2*i+1}')
    e(f'''s_lshl_b32 s56, s49, 5
    v_add_u32 v6, s56, v3
    s_and_b32 s57, s48, 1
    s_cmp_ge_u32 s48, 4
    s_cbranch_scc1 {n}_v
    s_cmp_ge_u32 s48, 2
    s_cbranch_scc1 {n}_sm
    s_barrier''')
    pf('wo',44,0,2,2,140)
    pf('win',44,6,2,1,140,'s_mul_i32 s69, s2, 5504')
    pf('wout',44,7,1,1,142,'s_mul_i32 s69, s2, 2752')
    lab(n+'_sm')
    mfma(32,128,16,'0'); mfma(48,132,20,'0')
    e('s_nop 7\ns_nop 3')
    softmax8(32,24,25); softmax8(40,26,27); softmax8(48,24,25); softmax8(56,26,27)
    for i in range(16): e(f'v_cvt_pk_bf16_f32 v{64+i}, v{32+2*i}, v{33+2*i}')
    stamp(9)
    e(f'''s_cmp_ge_u32 s48, 2
    s_cbranch_scc1 {n}_k
    s_lshl_b32 s56, s5, 1
    s_add_u32 s56, s56, s49
    s_lshl_b32 s56, s56, 16
    s_lshl_b32 s58, s6, 13
    s_add_u32 s56, s56, s58
    s_lshl_b32 s58, s57, 12
    s_add_u32 s56, s56, s58
    s_add_u32 s56, s56, {PHIQ}
    v_lshlrev_b32 v7, 4, v2''')
    for i in range(4): e(f'buffer_store_dwordx4 {vr(64+4*i,4)}, v7, s[40:43], s56 offen offset:{i*1024}')
    e('s_endpgm')
    lab(n+'_k')
    e(f'''v_mul_u32_u24 v7, 272, v6
    v_lshl_add_u32 v7, v4, 5, v7
    s_lshl_b32 s56, s57, 7
    v_add_u32 v7, s56, v7''')
    for i in range(4): e(f'ds_write_b128 v7, {vr(64+4*i,4)} offset:{(i>>1)*64+(i&1)*16}')
    e(f's_waitcnt lgkmcnt(0)\ns_barrier\ns_endpgm')
    lab(n+'_v')
    e(f'''v_mul_u32_u24 v7, 144, v6
    v_lshl_add_u32 v7, v4, 4, v7
    s_lshl_b32 s56, s57, 6
    v_add_u32 v7, s56, v7
    ds_write_b128 v7, v[16:19] offset:17408
    ds_write_b128 v7, v[20:23] offset:17440
    s_lshl_b32 s58, s49, 1
    s_add_u32 s58, s58, s57
    s_lshl_b32 s56, s6, 2
    v_mov_b32 v9, 0
    s_mov_b32 s59, 0''')
    stamp(9)
    lab(n+'_poll')
    e(f'''buffer_load_dword v8, v9, s[64:67], s56 offen sc0 sc1
    s_add_u32 s59, s59, 1
    s_waitcnt vmcnt(0)
    v_readfirstlane_b32 s63, v8
    s_cmp_gt_u32 s59, 0x4000
    s_cbranch_scc1 {n}_go
    s_cmp_lt_u32 s63, 4
    s_cbranch_scc1 {n}_poll''')
    lab(n+'_go'); stamp(10)
    tr_base(10,5,6,0,8,stride=272,swz=False)
    e(f'''v_bfe_u32 v5, v2, 2, 2
    v_lshl_add_u32 v11, v4, 3, v5
    v_mul_u32_u24 v11, 144, v11
    v_and_b32 v5, 3, v2
    v_lshl_add_u32 v11, v5, 3, v11
    s_lshl_b32 s57, s58, 6
    v_add_u32 v10, s57, v10
    s_lshl_b32 s57, s58, 5
    v_add_u32 v11, s57, v11
    v_cmp_lt_u32 vcc, 15, v3
    v_mov_b32 v12, 0x3f803f80
    s_waitcnt lgkmcnt(0)
    s_barrier''')
    for ks in range(4):
        for h in range(2):
            e(f'ds_read_b64_tr_b16 {vr(16+4*ks+2*h,2)}, v11 offset:{17408+(ks*16+4*h)*144}')
            e(f'ds_read_b64_tr_b16 {vr(32+4*ks+2*h,2)}, v10 offset:{(ks*16+4*h)*272}')
    e('s_waitcnt lgkmcnt(0)')
    for i in range(16): e(f'v_cndmask_b32 v{16+i}, v{16+i}, v12, vcc')
    e('s_nop 1')
    stamp(11)
    for ks in range(4): mfma(48,16+4*ks,32+4*ks,'0' if ks==0 else None)
    e(f'''s_add_u32 s56, s56, s58
    s_mul_i32 s56, s56, 2176
    v_lshlrev_b32 v7, 2, v3
    v_lshl_add_u32 v7, v4, 9, v7
    s_nop 7
    s_nop 3''')
    for r in range(8): e(f'buffer_atomic_add_f32 v{48+r}, v7, s[40:43], s56 offen offset:{((r&3)+8*(r>>2))*128} sc1')
    e('s_mov_b64 exec, 0xffffffff\nbuffer_atomic_add_f32 v56, v7, s[40:43], s56 offen offset:2048 sc1')
    end(n)
import struct,math
def fb(x): return hex(struct.unpack('<I',struct.pack('<f',x))[0])
def kernelB2():
    n='kb2_kernel'; begin(n,152)
    srd(36,'win'); srd(40,'ws')
    def colbase(): e('''s_lshr_b32 s56, s6, 2
        s_mul_i32 s50, s56, 1376
        s_and_b32 s56, s6, 3
        s_mul_i32 s56, s56, 384
        s_add_u32 s50, s50, s56''')
    front(n,40,HH,2752,colbase,lambda ph:None,128,0)
    k0=-2*0.7978845608028654*math.log2(math.e)
    e(f'''s_mov_b32 s60, {fb(k0*0.044715)}
    s_mov_b32 s61, s60
    s_mov_b32 s62, 1.0
    s_mov_b32 s63, 1.0
    v_mov_b32 v8, {fb(k0)}
    v_mov_b32 v9, {fb(k0)}
    s_and_b32 s57, s6, 3
    s_mul_i32 s57, s57, 6
    s_add_u32 s57, s57, s48
    s_lshl_b32 s58, s5, 1
    s_add_u32 s58, s58, s49
    s_nop 7
    s_nop 1''')
    A=ACC
    P=lambda b,i: vr(b+2*i,2)
    for i in range(8): e(f'v_pk_mul_f32 {P(16,i)}, {P(A,i)}, {P(A,i)}')
    for i in range(8): e(f'v_pk_fma_f32 {P(16,i)}, {P(16,i)}, s[60:61], v[8:9]')
    for i in range(8): e(f'v_pk_mul_f32 {P(16,i)}, {P(16,i)}, {P(A,i)}')
    for i in range(16): e(f'v_exp_f32 v{16+i}, v{16+i}')
    for i in range(8): e(f'v_pk_add_f32 {P(16,i)}, {P(16,i)}, s[62:63]')
    for i in range(16): e(f'v_rcp_f32 v{16+i}, v{16+i}')
    for i in range(8): e(f'v_pk_mul_f32 {P(A,i)}, {P(16,i)}, {P(A,i)}')
    e(f's_cmp_ge_u32 s6, 4\ns_cbranch_scc1 {n}_z2')
    pf('wsp',44,0,8,2,140,'s_lshl_b32 s69, s5, 18\ns_lshl_b32 s68, s6, 16\ns_add_u32 s69, s69, s68')
    for i in range(8): e(f'v_cvt_pk_bf16_f32 v{16+i}, v{A+2*i}, v{A+2*i+1}')
    e(f'''s_mul_i32 s56, s58, 24
    s_add_u32 s56, s56, s57
    s_lshl_b32 s56, s56, 11
    s_add_u32 s56, s56, {Z1}
    v_lshlrev_b32 v7, 4, v2
    buffer_store_dwordx4 v[16:19], v7, s[40:43], s56 offen
    buffer_store_dwordx4 v[20:23], v7, s[40:43], s56 offen offset:1024
    s_endpgm''')
    lab(n+'_z2')
    e(f's_cmp_lt_u32 s57, 21\ns_cbranch_scc1 {n}_nm')
    for i in range(8,16): e(f'v_mov_b32 v{A+i}, 0')
    e(f's_cmp_lt_u32 s57, 22\ns_cbranch_scc1 {n}_nm')
    for i in range(8): e(f'v_mov_b32 v{A+i}, 0')
    lab(n+'_nm')
    e(f'v_pk_add_f32 v[16:17], {vr(A,2)}, {vr(A+2,2)}\nv_pk_mul_f32 v[18:19], {vr(A,2)}, {vr(A,2)}\nv_pk_fma_f32 v[18:19], {vr(A+2,2)}, {vr(A+2,2)}, v[18:19]')
    for i in range(2,8):
        p=vr(A+2*i,2); e(f'v_pk_add_f32 v[16:17], v[16:17], {p}\nv_pk_fma_f32 v[18:19], {p}, {p}, v[18:19]')
    e('v_add_f32 v16, v16, v17\nv_add_f32 v17, v18, v19')
    swapred('v_add_f32',16,18); swapred('v_add_f32',17,19)
    e(f'''s_lshl_b32 s56, s49, 5
    v_add_u32 v6, s56, v3
    v_lshlrev_b32 v6, 3, v6
    s_lshl_b32 s56, s48, 9
    v_add_u32 v7, s56, v6
    ds_write_b64 v7, v[16:17]
    s_waitcnt lgkmcnt(0)
    s_barrier
    s_cmp_lg_u32 s7, 0
    s_cbranch_scc1 {n}_w
    v_lshlrev_b32 v7, 3, v2''')
    for c in range(6): e(f'ds_read_b64 {vr(16+2*c,2)}, v7 offset:{c*512}')
    e(f'''s_lshl_b32 s56, s5, 11
    s_add_u32 s56, s56, {STATS}
    s_and_b32 s59, s6, 3
    s_lshl_b32 s59, s59, 9
    s_add_u32 s59, s59, s56
    s_waitcnt lgkmcnt(0)''')
    for c in range(1,6): e(f'v_pk_add_f32 v[16:17], v[16:17], {vr(16+2*c,2)}')
    e(f'buffer_store_dwordx2 v[16:17], v7, s[40:43], s59 offen sc0 sc1\ns_mov_b32 s59, 0')
    stamp(9)
    lab(n+'_poll')
    for c in range(4): e(f'buffer_load_dwordx2 {vr(20+2*c,2)}, v7, s[40:43], s56 offen offset:{c*512} sc0 sc1')
    e(f'''s_add_u32 s59, s59, 1
    s_waitcnt vmcnt(0)
    v_max_u32 v18, v21, v23
    v_max3_u32 v18, v18, v25, v27
    v_cmp_eq_u32 vcc, -1, v18
    s_cmp_gt_u32 s59, 0x4000
    s_cbranch_scc1 {n}_go
    s_nop 1
    s_cbranch_vccnz {n}_poll''')
    lab(n+'_go'); stamp(10)
    e(f'''v_pk_add_f32 v[20:21], v[20:21], v[22:23]
    v_pk_add_f32 v[24:25], v[24:25], v[26:27]
    v_pk_add_f32 v[20:21], v[20:21], v[24:25]
    v_mul_f32 v20, {fb(1/688)}, v20
    v_mul_f32 v21, {fb(1/688)}, v21
    v_fma_f32 v21, -v20, v20, v21
    v_max_f32 v21, 0, v21
    v_add_f32 v21, 0x3727c5ac, v21
    v_rsq_f32 v21, v21
    s_nop 0
    v_mul_f32 v20, v20, v21
    v_mul_f32 v20, -1.0, v20
    ds_write_b64 v7, v[20:21] offset:4096
    s_waitcnt lgkmcnt(0)''')
    lab(n+'_w')
    e(f'''s_barrier
    ds_read_b64 v[16:17], v6 offset:4096
    s_mul_i32 s56, s7, 2560
    s_add_u32 s56, s56, 8192
    v_mul_u32_u24 v7, 80, v3
    v_lshl_add_u32 v7, v4, 3, v7
    v_add_u32 v7, s56, v7''')
    tr_base(10,8,9,0,8,stride=80,swz=False,ctbit='s56')
    e(f'''s_mul_i32 s56, s5, 98304
    s_lshl_b32 s59, s57, 12
    s_add_u32 s56, s56, s59
    s_add_u32 s56, s56, {Z2T}
    s_lshl_b32 s59, s49, 2
    v_bfe_u32 v8, v3, 1, 3
    v_xor_b32 v8, v8, v4
    v_xor_b32 v8, s59, v8
    v_xor_b32 v9, 2, v8
    v_lshlrev_b32 v11, 7, v3
    v_lshl_add_u32 v8, v8, 4, v11
    v_lshl_add_u32 v9, v9, 4, v11
    s_waitcnt lgkmcnt(0)''')
    for i in range(16): e(f'v_fma_f32 v{A+i}, v{A+i}, v17, v16')
    for i in range(8): e(f'v_cvt_pk_bf16_f32 v{20+i}, v{A+2*i}, v{A+2*i+1}')
    for q in range(4): e(f'ds_write_b64 v7, {vr(20+2*q,2)} offset:{q*16}')
    e('s_waitcnt lgkmcnt(0)')
    for m in range(2):
        for h in range(2): e(f'ds_read_b64_tr_b16 {vr(32+4*m+2*h,2)}, v10 offset:{(m*16+4*h)*80}')
    e(f'''s_waitcnt lgkmcnt(0)
    buffer_store_dwordx4 v[32:35], v8, s[40:43], s56 offen
    buffer_store_dwordx4 v[36:39], v9, s[40:43], s56 offen''')
    end(n)
```

```python
from g2 import *
def wdma(nin):
    e(f'''s_mul_i32 s50, s7, {nin*8192}
    s_lshl_b32 s51, s6, 7
    s_add_u32 s50, s50, s51
    s_mul_i32 s51, s7, {nin*1024}
    v_lshrrev_b32 v8, 3, v2
    v_lshlrev_b32 v8, 10, v8
    v_bfe_u32 v9, v2, 4, 1
    v_lshlrev_b32 v9, 2, v9
    v_and_b32 v10, 7, v2
    v_xor_b32 v9, v9, v10
    v_lshl_add_u32 v8, v9, 4, v8''')
    for i in range(nin):
        e(f'''s_add_u32 m0, s51, {i*1024}
        s_add_u32 s52, s50, {i*8192}
        buffer_load_dwordx4 v8, s[36:39], s52 offen lds''')
def resload(rs,off,dst):
    e(f'''s_lshl_b32 s53, s5, 16
    s_lshl_b32 s54, s6, 7
    s_add_u32 s53, s53, s54
    s_add_u32 s54, s53, {off}
    v_lshrrev_b32 v5, 3, v0
    v_and_b32 v6, 7, v0
    v_lshlrev_b32 v7, 10, v5
    v_lshl_add_u32 v7, v6, 4, v7
    buffer_load_dwordx4 {vr(dst,4)}, v7, s[{rs}:{rs+3}], s54 offen''')
def reduce_out(acc,RB,res,os,ooff):
    e(f'''s_mul_i32 s56, s48, 17408
    s_mul_i32 s57, s49, {32*272}
    s_add_u32 s56, s56, s57
    s_add_u32 s56, s56, {RB}
    v_mul_u32_u24 v8, 272, v3
    v_lshl_add_u32 v8, v4, 4, v8
    v_add_u32 v8, s56, v8
    v_mul_u32_u24 v9, 272, v5
    v_lshl_add_u32 v9, v6, 5, v9
    v_add_u32 v9, {RB}, v9
    s_add_u32 s54, s53, {ooff}
    s_nop 7''')
    for ct in range(2):
        for q in range(4): e(f'ds_write_b128 v8, {vr(acc+16*ct+4*q,4)} offset:{ct*128+q*32}')
    stamp(11)
    e('s_waitcnt lgkmcnt(0)\ns_barrier'); stamp(12)
    for k in range(4):
        for h in range(2): e(f'ds_read_b128 {vr(16+8*k+4*h,4)}, v9 offset:{k*17408+h*16}')
    for i in range(4): e(f'v_lshlrev_b32 v{48+2*i}, 16, v{res+i}\nv_and_b32 v{49+2*i}, 0xffff0000, v{res+i}')
    e('s_waitcnt lgkmcnt(0)')
    for k in (0,2):
        for i in range(4): e(f'v_pk_add_f32 {vr(16+8*k+2*i,2)}, {vr(16+8*k+2*i,2)}, {vr(24+8*k+2*i,2)}')
    for i in range(4): e(f'v_pk_add_f32 {vr(16+2*i,2)}, {vr(16+2*i,2)}, {vr(32+2*i,2)}')
    for i in range(4): e(f'v_pk_add_f32 {vr(16+2*i,2)}, {vr(16+2*i,2)}, {vr(48+2*i,2)}')
    for i in range(4): e(f'v_cvt_pk_bf16_f32 v{24+i}, v{16+2*i}, v{17+2*i}')
    e(f'buffer_store_dwordx4 v[24:27], v7, s[{os}:{os+3}], s54 offen')
def kernelB1():
    n='kb1_kernel'; begin(n,164)
    srd(32,'x'); srd(36,'wo'); srd(40,'ws')
    e(f'''s_and_b32 s49, s7, 1
    s_lshr_b32 s48, s7, 1
    v_lshrrev_b32 v5, 3, v2
    v_and_b32 v6, 7, v2
    v_xor_b32 v6, v5, v6
    v_lshlrev_b32 v5, 7, v5
    v_lshl_add_u32 v5, v6, 4, v5
    s_lshl_b32 s56, s7, 2
    s_add_u32 s56, s56, 135168
    v_mov_b32 v162, s56
    v_mov_b32 v163, 0
    ds_write_b32 v162, v163
    s_mul_i32 s56, s48, 17408
    s_lshl_b32 s57, s49, 13
    s_add_u32 s56, s56, s57
    s_add_u32 m0, s56, 65536
    s_waitcnt lgkmcnt(0)
    s_barrier
    s_lshl_b32 s57, s5, 1
    s_add_u32 s57, s57, s49
    s_lshl_b32 s57, s57, 16
    s_lshl_b32 s58, s48, 14
    s_add_u32 s57, s57, s58
    s_add_u32 s57, s57, {PHIQ}
    v_lshlrev_b32 v6, 4, v2''')
    for i in range(4): e(f'buffer_load_dwordx4 v5, s[40:43], s56 offen offset:{i*1024} lds')
    e('s_add_u32 m0, s56, 69632\ns_add_u32 s56, s56, 4096')
    for i in range(4): e(f'buffer_load_dwordx4 v5, s[40:43], s56 offen offset:{i*1024} lds')
    e(f'''s_add_u32 m0, s56, 69632
    s_add_u32 s56, s56, 4096
    s_nop 0
    buffer_load_dwordx4 v5, s[40:43], s56 offen lds''')
    def pq(hh):
        for f in range(2): e(f'buffer_load_dwordx4 {vr(16+8*hh+4*f,4)}, v160, s[40:43], s57 offen offset:{(hh&1)*2048+f*1024}')
        if hh&1: e('s_add_u32 s57, s57, 4096')
    wdma(8)
    e('v_mov_b32 v160, v6')
    pq(0); pq(1)
    resload(32,0,12)
    tr_base(11,8,9,0,8)
    e(f's_lshl_b32 s56, s48, 14\nv_add_u32 v11, s56, v11\nv_xor_b32 v10, 64, v11')
    AC=112; T=144
    e(f'''v_min_u32 v8, 16, v3
    s_mul_i32 s56, s48, 136
    v_add_u32 v8, s56, v8
    v_lshlrev_b32 v9, 2, v4
    s_waitcnt vmcnt(5)''')
    stamp(2)
    e('''v_mov_b32 v163, 1
    ds_write_b32 v162, v163
    v_xor_b32 v162, 4, v162
    s_mov_b32 s58, 0''')
    lab(n+'_ps')
    e(f'''ds_read_b32 v163, v162
    s_add_u32 s58, s58, 1
    s_waitcnt lgkmcnt(0)
    v_readfirstlane_b32 s59, v163
    s_cmp_gt_u32 s58, 0x100000
    s_cbranch_scc1 {n}_pg
    s_cmp_lg_u32 s59, 1
    s_cbranch_scc1 {n}_ps''')
    lab(n+'_pg')
    def rd(hh):
        b=80+16*(hh&1)
        e(f'''v_add_u32 v1, {17*hh}, v8
        v_and_b32 v0, 7, v1
        v_xor_b32 v0, v0, v9
        v_lshlrev_b32 v1, 7, v1
        v_lshl_add_u32 v0, v0, 4, v1
        v_add_u32 v0, 65536, v0''')
        for j in range(4):
            if j: e(f'v_xor_b32 v1, {16*j}, v0')
            e(f'ds_read_b128 {vr(b+4*j,4)}, v{1 if j else 0}')
    rd(0); pq(2); pq(3)
    for hh in range(8):
        b=80+16*(hh&1); q=16+8*hh
        e(f's_waitcnt vmcnt({[7,6,6,6,6,4,2,0][hh]}) lgkmcnt(0)')
        stamp(3+hh)
        for i in range(8): e(f'v_cvt_pk_bf16_f32 v{b+i}, v{b+2*i}, v{b+2*i+1}')
        for ct in range(2):
            for h in range(2): e(f'ds_read_b64_tr_b16 {vr(b+8+4*ct+2*h,2)}, v{11-ct} offset:{hh*2048+h*512}')
        mfma(T,b,q,'0'); mfma(T,b+4,q+4)
        if hh<4: pq(hh+4)
        if hh<7: rd(hh+1)
        else: e('s_nop 7')
        e(f's_nop 3\nv_add_f32 v1, 0x358637bd, v{T+8}\nv_rcp_f32 v0, v1\ns_nop 0\nv_mov_b32 v1, v0')
        for i in range(4): e(f'v_pk_mul_f32 {vr(T+2*i,2)}, {vr(T+2*i,2)}, v[0:1]')
        for i in range(4): e(f'v_cvt_pk_bf16_f32 v{q+i}, v{T+2*i}, v{T+2*i+1}')
        e(f's_waitcnt lgkmcnt({4 if hh<7 else 0})\ns_nop 0')
        for ct in range(2): mfma(AC+16*ct,b+8+4*ct,q,'0' if hh==0 else None)
    pf('win',60,0,6,2,161)
    e('s_barrier')
    reduce_out(AC,65536,12,40,HH)
    e(f'''s_cmp_lg_u32 s7, 0
    s_cbranch_scc1 {n}_ns
    s_cmp_ge_u32 s6, 4
    s_cbranch_scc1 {n}_ns
    s_lshl_b32 s56, s5, 11
    s_lshl_b32 s57, s6, 9
    s_add_u32 s56, s56, s57
    s_add_u32 s56, s56, {STATS}
    v_lshlrev_b32 v8, 3, v2
    v_mov_b32 v10, -1
    v_mov_b32 v11, -1
    buffer_store_dwordx2 v[10:11], v8, s[40:43], s56 offen''')
    lab(n+'_ns')
    end(n)
def kernelC2():
    n='kc2_kernel'; begin(n,192)
    srd(32,'out'); srd(36,'wout'); srd(40,'ws')
    e(f'''s_and_b32 s49, s7, 1
    s_lshr_b32 s48, s7, 1
    s_lshl_b32 s57, s5, 1
    s_add_u32 s57, s57, s49
    s_mul_i32 s57, s57, 48
    s_mul_i32 s58, s48, 11
    s_add_u32 s57, s57, s58
    s_lshl_b32 s57, s57, 10
    s_add_u32 s57, s57, {UU}
    v_lshlrev_b32 v6, 4, v2''')
    wdma(11)
    e('v_mov_b32 v184, v6')
    def ul(k):
        e(f'buffer_load_dwordx4 {vr(16+4*k,4)}, v184, s[40:43], s57 offen offset:{(k&3)*1024}')
        if k&3==3: e('s_add_u32 s57, s57, 4096')
    ul(0); ul(1)
    resload(40,HH,12)
    tr_base(11,8,9,0,4)
    e(f's_mul_i32 s56, s48, 22528\nv_add_u32 v11, s56, v11\nv_xor_b32 v10, 64, v11\ns_waitcnt vmcnt(3)'); stamp(2); e('s_barrier'); stamp(3)
    AC=152
    def rd(k):
        for ct in range(2):
            for h in range(2): e(f'ds_read_b64_tr_b16 {vr(64+8*k+4*ct+2*h,2)}, v{11-ct} offset:{k*2048+h*1024}')
    for k in range(3): rd(k)
    for k in range(2,6): ul(k)
    for k in range(11):
        if k+6<11: ul(k+6)
        if k+3<11: rd(k+3)
        e(f's_waitcnt vmcnt({min(10,k+6)-k if k>=2 else 5+k}) lgkmcnt({4*(min(10,k+3)-k)})')
        for ct in range(2): mfma(AC+16*ct,64+8*k+4*ct,16+4*k,'0' if k==0 else None)
    reduce_out(AC,90112,12,32,0)
    end(n)
def kernelC1():
    n='kc1_kernel'; begin(n,144)
    srd(32,'bsp'); srd(36,'wsp'); srd(40,'ws')
    e(f'''s_and_b32 s49, s7, 1
    s_lshr_b32 s48, s7, 1
    s_lshr_b32 s50, s7, 2
    s_and_b32 s51, s7, 3
    s_mul_i32 s52, s50, 20480
    s_mul_i32 s53, s51, 3072
    s_add_u32 s54, s52, s53
    s_lshl_b32 s55, s51, 11
    s_add_u32 s55, s55, s52
    s_add_u32 s55, s55, 12288
    s_mul_i32 s56, s50, 98304
    s_mul_i32 s57, s6, 12288
    s_add_u32 s56, s56, s57
    s_add_u32 s56, s56, s53
    s_add_u32 s56, s56, {Z2T}
    v_lshlrev_b32 v5, 4, v2
    s_lshl_b32 s57, s5, 18
    s_lshl_b32 s58, s51, 16
    s_add_u32 s57, s57, s58
    s_lshl_b32 s58, s50, 7
    s_add_u32 s57, s57, s58
    v_lshrrev_b32 v6, 3, v2
    v_lshlrev_b32 v6, 12, v6
    v_lshrrev_b32 v7, 4, v2
    v_and_b32 v8, 7, v2
    v_xor_b32 v7, v7, v8
    v_xor_b32 v8, 4, v7
    v_lshl_add_u32 v7, v7, 4, v6
    v_lshl_add_u32 v8, v8, 4, v6
    v_add_u32 v8, {8*4096-1024}, v8''')
    def dma(st):
        sl=(st&3)*40960
        e(f's_add_u32 m0, s54, {sl}\ns_add_u32 s58, s56, {st*2*98304}')
        for i in range(3): e(f'buffer_load_dwordx4 v5, s[40:43], s58 offen offset:{i*1024} lds')
        e(f'''s_add_u32 m0, s55, {sl}
        s_add_u32 s58, s57, {st*256}
        buffer_load_dwordx4 v7, s[36:39], s58 offen lds
        buffer_load_dwordx4 v8, s[36:39], s58 offen offset:1024 lds''')
    e(f'''s_lshl_b32 s59, s5, 7
    s_lshl_b32 s60, s50, 6
    s_add_u32 s59, s59, s60
    v_lshlrev_b32 v10, 1, v3
    buffer_load_ushort v9, v10, s[32:35], s59 offen
    s_lshl_b32 s59, s5, 1
    s_add_u32 s59, s59, s50
    s_mul_i32 s59, s59, 48
    s_mul_i32 s60, s6, 6
    s_add_u32 s59, s59, s60
    s_lshl_b32 s59, s59, 10
    s_mul_i32 s60, s51, 3''')
    for i in range(3):
        e(f'''s_add_u32 s61, s60, {i}
        s_lshr_b32 s62, s61, 1
        s_lshl_b32 s62, s62, 10
        s_and_b32 s61, s61, 1
        s_lshl_b32 s61, s61, 3
        s_add_u32 s62, s62, s61
        s_add_u32 s{64+i}, s62, s59
        s_add_u32 s62, s{64+i}, {Z1}
        s_add_u32 s{64+i}, s{64+i}, {UU}
        buffer_load_dwordx2 {vr(128+2*i,2)}, v5, s[40:43], s62 offen''')
    for st in range(2): dma(st)
    e(f'''s_lshl_b32 s59, s48, 1
    v_bfe_u32 v10, v3, 1, 3
    v_xor_b32 v10, v10, v4
    v_xor_b32 v10, s59, v10
    v_lshlrev_b32 v10, 4, v10
    v_lshl_add_u32 v10, v3, 7, v10
    s_lshl_b32 s59, s49, 12
    s_add_u32 s59, s59, 12288
    v_add_u32 v134, s59, v10
    v_add_u32 v11, 40960, v10
    v_add_u32 v12, 81920, v10
    v_add_u32 v13, 122880, v10
    v_add_u32 v135, 40960, v134
    v_add_u32 v136, 81920, v134
    v_add_u32 v137, 122880, v134''')
    AC=80
    def reads(st):
        o=(st&1)*32; sl=st&3
        for sb in range(2):
            e(f'ds_read_b128 {vr(16+o+16*sb+12,4)}, v{134+sl} offset:{sb*20480}')
            for t in range(3): e(f'ds_read_b128 {vr(16+o+16*sb+4*t,4)}, v{10+sl} offset:{sb*20480+t*4096}')
    def mm(st):
        o=(st&1)*32
        for sb in range(2):
            for t in range(3): mfma(AC+16*t,16+o+16*sb+4*t,16+o+16*sb+12,'0' if st==0 and sb==0 else None)
    for st in range(16):
        vm=5 if st==0 else min(10,5*(15-st))
        e(f's_waitcnt vmcnt({vm}) lgkmcnt(0)\ns_barrier')
        if st in (0,1,2,4,8,12,15): stamp({0:2,1:3,2:4,4:5,8:6,12:7,15:8}[st])
        reads(st)
        if st>=1: mm(st-1)
        if st>=1 and st+3<16: dma(st+3)
        if st==0: dma(2); dma(3)
    e('s_waitcnt lgkmcnt(0)')
    mm(15)
    pf('wout',32,0,6,1,138)
    e(f'''s_mul_i32 s59, s7, 12288
    v_add_u32 v10, s59, v5
    s_mul_i32 s59, s50, 12288
    s_add_u32 s59, s59, s53
    v_add_u32 v11, s59, v5
    v_add_u32 v12, 49152, v11
    v_lshlrev_b32 v9, 16, v9
    s_nop 7
    s_barrier''')
    stamp(9)
    for i in range(12): e(f'ds_write_b128 v10, {vr(AC+4*i,4)} offset:{i*1024}')
    e('s_waitcnt lgkmcnt(0)\ns_barrier')
    for i in range(3):
        for k in range(4): e(f'ds_read_b128 {vr(16+16*i+4*k,4)}, v{11+(k>>1)} offset:{(k&1)*24576+i*1024}')
    for i in range(3):
        b=16+16*i
        e(f's_waitcnt lgkmcnt({4*(2-i)})')
        for j in range(4): e(f'v_pk_add_f32 {vr(b+2*j,2)}, {vr(b+2*j,2)}, {vr(b+8+2*j,2)}')
        for j in range(2): e(f'v_pk_add_f32 {vr(b+2*j,2)}, {vr(b+2*j,2)}, {vr(b+4+2*j,2)}')
        for j in range(2): e(f'v_lshlrev_b32 v{b+4+2*j}, 16, v{128+2*i+j}\nv_and_b32 v{b+5+2*j}, 0xffff0000, v{128+2*i+j}')
        for j in range(4): e(f'v_add_f32 v{b+j}, v{b+j}, v9')
        for j in range(4): e(f'v_mul_f32 v{b+j}, v{b+j}, v{b+4+j}')
        e(f'v_cvt_pk_bf16_f32 v{b+8}, v{b}, v{b+1}\nv_cvt_pk_bf16_f32 v{b+9}, v{b+2}, v{b+3}')
        e(f'buffer_store_dwordx2 {vr(b+8,2)}, v5, s[40:43], s{64+i} offen')
    end(n)
def build(path):
    kernelA(); kernelB1(); kernelB2(); kernelC1(); kernelC2()
    ref=open('sequential_preLN__linear_kernel_hedgehog__mixer_gmlp__prompt.s.ref').read().split('\n')
    hd=[l for l in ref if l.startswith(';') and '@launch' not in l]
    for nm,b,l in (('ka',768,163840),('kb1',512,135232),('kb2',768,163840),('kc1',512,163840),('kc2',512,159744)):
        hd.append(f'; @launch kernel={nm}_kernel grid=(256,1,1) block=({b},1,1) lds={l}')
    hd+=['.amdgcn_target "amdgcn-amd-amdhsa--gfx950"','.text']
    tl=['.section .rodata,"a"']
    for nm,vg in KD:
        tl.append(f'''.p2align 6
.amdhsa_kernel {nm}
  .amdhsa_next_free_vgpr {vg}
  .amdhsa_next_free_sgpr 102
  .amdhsa_accum_offset {(vg+3)//4*4}
  .amdhsa_group_segment_fixed_size 0
  .amdhsa_kernarg_size 96
  .amdhsa_user_sgpr_count 2
  .amdhsa_user_sgpr_kernarg_segment_ptr 1
  .amdhsa_system_sgpr_workgroup_id_x 1
.end_amdhsa_kernel''')
    open(path,'w').write('\n'.join(hd+L+tl)+'\n')
if __name__=='__main__':
    import sys
    build(sys.argv[1] if len(sys.argv)>1 else 'sequential_preLN__linear_kernel_hedgehog__mixer_gmlp__prompt.s')
```
